```python
import torch

def _softmax(x, axis=-1):
    return torch.softmax(x, dim=axis)
def _gelu(x):
    return torch.nn.functional.gelu(x, approximate="tanh")
def _silu(x):
    return torch.nn.functional.silu(x)
def _sigmoid(x):
    return torch.sigmoid(x)
def _layernorm(x, axis=-1, eps=1e-5):
    m = x.mean(dim=axis, keepdim=True)
    v = x.var(dim=axis, keepdim=True, unbiased=False)
    return (x - m) / torch.sqrt(v + eps)
def _scatter_add(tgt, idx, src, axis=0):
    return tgt.clone().index_add_(axis, idx, src)
def _segment_sum(src, seg, n):
    out = torch.zeros((n,) + src.shape[1:], dtype=src.dtype)
    return out.index_add_(0, seg, src)
def _pad(x, pw):
    flat = tuple(v for pair in reversed(pw) for v in pair)
    return torch.nn.functional.pad(x, flat)

kernel_name = 'concat_heads__gqa_block_cached__mha_block_cached__near_ridge'

def setup_inputs():

    _w = (lambda a: (lambda t: t.to(torch.bfloat16) if t.is_floating_point() else t)(torch.as_tensor(a)))
    def _A_setup():
        B, Sq, D = 16, 128, 640
        Hq, Hkv, Sk, Dh = 32, 32, 512, 192
        assert Hq % Hkv == 0, (Hq, Hkv)
        return {
            "x": _w((lambda *s: torch.randn(*s, dtype=torch.bfloat16) * 0.8)(B, Sq, D)),
            "k_cache": _w((lambda *s: torch.randn(*s, dtype=torch.bfloat16) * 0.8)(B, Hkv, Sk, Dh)),
            "v_cache": _w((lambda *s: torch.randn(*s, dtype=torch.bfloat16) * 0.05)(B, Hkv, Sk, Dh)),
            "wq": _w((lambda *s: torch.randn(*s, dtype=torch.bfloat16) * 0.8)(D, Hq * Dh) * (D ** -0.5)),
            "wo": _w((lambda *s: torch.randn(*s, dtype=torch.bfloat16) * 0.05)(Hq * Dh, D) * ((Hq * Dh) ** -0.5)),
        }
    _A_in = _A_setup()

    def _B_setup():
        B, Sq, D = 16, 128, 640
        H, Sk, Dh = 32, 512, 192
        return {
            "x": _w((lambda *s: torch.randn(*s, dtype=torch.bfloat16) * 0.8)(B, Sq, D)),
            "k_cache": _w((lambda *s: torch.randn(*s, dtype=torch.bfloat16) * 0.8)(B, H, Sk, Dh)),
            "v_cache": _w((lambda *s: torch.randn(*s, dtype=torch.bfloat16) * 0.05)(B, H, Sk, Dh)),
            "wq": _w((lambda *s: torch.randn(*s, dtype=torch.bfloat16) * 0.8)(D, H * Dh) * (D ** -0.5)),
            "wo": _w((lambda *s: torch.randn(*s, dtype=torch.bfloat16) * 0.05)(H * Dh, D) * ((H * Dh) ** -0.5)),
        }
    _B_in = _B_setup()

    return {
        "A_x": _A_in["x"],
        "A_k_cache": _A_in["k_cache"],
        "A_v_cache": _A_in["v_cache"],
        "A_wq": _A_in["wq"],
        "A_wo": _A_in["wo"],
        "B_x": _B_in["x"],
        "B_k_cache": _B_in["k_cache"],
        "B_v_cache": _B_in["v_cache"],
        "B_wq": _B_in["wq"],
        "B_wo": _B_in["wo"],
    }

def reference(A_x, A_k_cache, A_v_cache, A_wq, A_wo, B_x, B_k_cache, B_v_cache, B_wq, B_wo):
    def _A_ref(x, k_cache, v_cache, wq, wo):
        B, Sq, D = x.shape
        Hq, Dh = 32, 192
        Hkv = k_cache.shape[1]
        rep = Hq // Hkv
        q = (lambda x, *d: x.permute(*d))((x @ wq).reshape(B, Sq, Hq, Dh), 0, 2, 1, 3)
        k = (lambda x, n, axis: torch.repeat_interleave(x, n, dim=axis))(k_cache, rep, axis=1)
        v = (lambda x, n, axis: torch.repeat_interleave(x, n, dim=axis))(v_cache, rep, axis=1)
        scores = torch.einsum("bhqd,bhkd->bhqk", q, k) * (Dh ** -0.5)
        p = _softmax(scores, axis=-1)
        o = torch.einsum("bhqk,bhkd->bhqd", p, v)
        return (lambda x, *d: x.permute(*d))(o, 0, 2, 1, 3).reshape(B, Sq, Hq * Dh) @ wo

    def _B_ref(x, k_cache, v_cache, wq, wo):
        B, Sq, D = x.shape
        H, Dh = 32, 192
        q = (lambda x, *d: x.permute(*d))((x @ wq).reshape(B, Sq, H, Dh), 0, 2, 1, 3)
        scores = torch.einsum("bhqd,bhkd->bhqk", q, k_cache) * (Dh ** -0.5)
        p = _softmax(scores, axis=-1)
        o = torch.einsum("bhqk,bhkd->bhqd", p, v_cache)
        return (lambda x, *d: x.permute(*d))(o, 0, 2, 1, 3).reshape(B, Sq, H * Dh) @ wo

    a = _A_ref(A_x, A_k_cache, A_v_cache, A_wq, A_wo)
    b = _B_ref(B_x, B_k_cache, B_v_cache, B_wq, B_wo)
    return torch.concatenate([a, b], axis=-1)
```

```python
import re

class Reg:
    __slots__ = ("k", "i", "n")
    def __init__(self, k, i, n=1):
        self.k, self.i, self.n = k, i, n
    def __str__(self):
        if self.n == 1:
            return f"{self.k}{self.i}"
        return f"{self.k}[{self.i}:{self.i+self.n-1}]"
    __repr__ = __str__
    def regs(self):
        return {(self.k, self.i + j) for j in range(self.n)}
    def __getitem__(self, idx):
        if isinstance(idx, slice):
            a = idx.start or 0
            b = idx.stop if idx.stop is not None else self.n
            assert 0 <= a < b <= self.n, (self, idx)
            return Reg(self.k, self.i + a, b - a)
        assert 0 <= idx < self.n, (self, idx)
        return Reg(self.k, self.i + idx, 1)
    def sub(self, off, n=1):
        assert 0 <= off and off + n <= self.n, (self, off, n)
        return Reg(self.k, self.i + off, n)

def V(i, n=1): return Reg("v", i, n)
def S(i, n=1): return Reg("s", i, n)
def A(i, n=1): return Reg("a", i, n)

class Neg:
    def __init__(self, r): self.r = r
    def __str__(self): return f"-{self.r}"

VCC = "vcc"; M0 = "m0"; EXEC = "exec"; SCC = "scc"
SPECIAL = {"vcc": {("x", "vcc")}, "m0": {("x", "m0")}, "exec": {("x", "exec")}}

TRANS = ("v_exp_f32", "v_log_f32", "v_rcp_f32", "v_rsq_f32", "v_sqrt_f32", "v_sin_f32", "v_cos_f32")

def opregs(o):
    if isinstance(o, Reg): return o.regs()
    if isinstance(o, Neg): return opregs(o.r)
    if isinstance(o, str) and o in SPECIAL: return set(SPECIAL[o])
    return set()

def fmt(o):
    if isinstance(o, float):
        import struct
        return "0x%08x" % struct.unpack("<I", struct.pack("<f", o))[0]
    if isinstance(o, int):
        if -16 <= o <= 64: return str(o)
        return hex(o & 0xffffffff)
    return str(o)

class Ins:
    def __init__(self, op, ops=(), mods="", tag=None, comment=None):
        self.op, self.ops, self.mods, self.tag, self.comment = op, list(ops), mods, tag, comment
        self.rd, self.wr = set(), set()
        self.kind = None
        self.target = None
        self.classify()
    def text(self):
        s = self.op
        if self.ops: s += " " + ", ".join(fmt(o) for o in self.ops)
        if self.mods: s += " " + self.mods
        return s
    def classify(self):
        op, o = self.op, self.ops
        R = lambda *xs: set().union(*[opregs(x) for x in xs]) if xs else set()
        self.srcA = self.srcB = self.srcC = set()
        if op.startswith("v_mfma"):
            self.kind = "mfma"
            self.wr = R(o[0]); self.srcA = R(o[1]); self.srcB = R(o[2]); self.srcC = R(o[3])
            self.rd = self.srcA | self.srcB | self.srcC
            self.passes = 8 if "32x32x16" in op else 4 if "16x16x32" in op else None
            assert self.passes
        elif op.startswith("ds_read") or op.startswith("ds_bpermute") or op.startswith("ds_swizzle"):
            self.kind = "ds_rd"; self.wr = R(o[0]); self.rd = R(*o[1:])
        elif op.startswith("ds_write"):
            self.kind = "ds_wr"; self.rd = R(*o)
        elif op.startswith("ds_add_rtn") :
            self.kind = "ds_rd"; self.wr = R(o[0]); self.rd = R(*o[1:])
        elif op.startswith("ds_add"):
            self.kind = "ds_wr"; self.rd = R(*o)
        elif op.startswith("buffer_load") or op.startswith("global_load"):
            if " lds" in (" " + self.mods) or "_lds_" in op:
                self.kind = "vm_lds"; self.rd = R(*o) | R("m0")
            else:
                self.kind = "vm_ld"; self.wr = R(o[0]); self.rd = R(*o[1:])
        elif op.startswith("buffer_store") or op.startswith("global_store"):
            self.kind = "vm_st"; self.rd = R(*o)
            self.wide = ("x4" in op or "x3" in op)
            self.data = R(o[0]) if op.startswith("buffer") else R(o[1])
        elif op.startswith("buffer_atomic") or op.startswith("global_atomic"):
            ret = "sc0" in self.mods.split()
            if op.startswith("buffer"):
                self.kind = "vm_ld" if ret else "vm_st"
                self.rd = R(*o); self.wr = R(o[0]) if ret else set()
            else:
                self.kind = "vm_ld" if ret else "vm_st"
                if ret: self.wr = R(o[0]); self.rd = R(*o[1:])
                else: self.rd = R(*o)
            self.wide = False; self.data = set()
        elif op in ("buffer_wbl2", "buffer_inv"):
            self.kind = "vm_st"; self.wide = False; self.data = set()
        elif op.startswith("s_load") or op.startswith("s_memtime") or op.startswith("s_memrealtime"):
            self.kind = "smem"; self.wr = R(o[0]); self.rd = R(*o[1:])
        elif op in ("s_waitcnt", "s_barrier", "s_nop", "s_setprio", "s_endpgm", "s_sleep"):
            self.kind = op
        elif op.startswith("s_cbranch") or op == "s_branch":
            self.kind = "branch"; self.target = o[0]
            if "vcc" in op: self.rd = R("vcc")
            if "exec" in op: self.rd = R("exec")
        elif op.startswith("s_cmp") or op.startswith("s_bitcmp"):
            self.kind = "salu"; self.rd = R(*o)
        elif op.startswith("s_"):
            self.kind = "salu"; self.wr = R(o[0]); self.rd = R(*o[1:])
            if op in ("s_addk_i32", "s_mulk_i32"): self.rd |= R(o[0])
            if "saveexec" in op: self.wr |= R("exec"); self.rd |= R("exec")
        elif op.startswith("v_"):
            self.kind = "valu"
            if op.startswith("v_cmp"):
                self.wr = R(o[0]); self.rd = R(*o[1:])
            elif op.startswith("v_permlane") and "swap" in op:
                self.wr = R(o[0], o[1]); self.rd = R(o[0], o[1])
            elif op.startswith("v_add_co") or op.startswith("v_sub_co") or op.startswith("v_addc_co"):
                self.wr = R(o[0], o[1]); self.rd = R(*o[2:])
            else:
                self.wr = R(o[0]); self.rd = R(*o[1:])
                if op.startswith("v_fmac") or op.startswith("v_mac") or op.startswith("v_dot2c") or op.startswith("v_pk_fmac"):
                    self.rd |= R(o[0])
                if op.startswith("v_cndmask") and len(o) == 3: self.rd |= R("vcc")
            self.trans = op.split("_e")[0] in TRANS or op in TRANS
        else:
            raise ValueError("unknown op " + op)

class Label:
    def __init__(self, name, align=None): self.name = name; self.align = align
    def text(self): return self.name + ":"

class Mark:
    def __init__(self, what, key): self.what, self.key = what, key

class WaitTag:
    def __init__(self, tags): self.tags = tags

class WaitLds:
    pass

class Raw:
    def __init__(self, t): self.t = t
    def text(self): return self.t

class Prog:
    def __init__(self, name):
        self.name = name
        self.items = []
        self.tail = []
        self.uid = 0
        self.cur = self.items
    def __call__(self, op, *ops, mods="", tag=None, comment=None):
        i = Ins(op, ops, mods, tag, comment)
        self.cur.append(i)
        return i
    def label(self, name, align=None): self.cur.append(Label(name, align))
    def raw(self, t): self.cur.append(Raw(t))
    def newlabel(self, base):
        self.uid += 1
        return f"L_{self.name}_{base}_{self.uid}"
    def begin(self, key): self.cur.append(Mark("b", key))
    def end(self, key): self.cur.append(Mark("e", key))
    def wait_tag(self, *tags): self.cur.append(WaitTag(set(tags)))
    def wait_lds(self): self.cur.append(WaitLds())

    def auto_wait(self, items):
        out = []
        vm = []
        lg = []
        def need(ins):
            nv = nl = None
            touched = ins.rd | ins.wr
            for idx, (d, t) in enumerate(vm):
                if d & touched: nv = len(vm) - 1 - idx
            for idx, (d, sm) in enumerate(lg):
                if d & touched:
                    nl = len(lg) - 1 - idx
            if nl is not None and any(sm for _, sm in lg): nl = 0
            return nv, nl
        def emit_wait(nv, nl):
            parts = []
            if nv is not None:
                assert nv <= 63, nv
                parts.append(f"vmcnt({nv})"); del vm[:len(vm) - nv]
            if nl is not None:
                if nl > 15: nl = 15
                parts.append(f"lgkmcnt({nl})"); del lg[:len(lg) - nl]
            if parts: out.append(Ins("s_waitcnt", [" ".join(parts)]))
        for it in items:
            if isinstance(it, WaitTag):
                nv = None
                for idx, (d, t) in enumerate(vm):
                    if t in it.tags: nv = len(vm) - 1 - idx
                emit_wait(nv, None)
                continue
            if isinstance(it, WaitLds):
                if lg: emit_wait(None, 0)
                continue
            if isinstance(it, Ins):
                if it.kind == "s_waitcnt":
                    m = re.search(r"vmcnt\((\d+)\)", it.ops[0])
                    if m:
                        n = int(m.group(1)); del vm[:max(0, len(vm) - n)]
                    m = re.search(r"lgkmcnt\((\d+)\)", it.ops[0])
                    if m:
                        n = int(m.group(1)); del lg[:max(0, len(lg) - n)]
                    out.append(it); continue
                nv, nl = need(it)
                emit_wait(nv, nl)
                if it.kind in ("vm_ld", "vm_lds", "vm_st"):
                    vm.append((set(it.wr), it.tag))
                    assert len(vm) <= 63, "too many vmem outstanding"
                elif it.kind in ("ds_rd", "ds_wr"):
                    lg.append((set(it.wr), False))
                elif it.kind == "smem":
                    lg.append((set(it.wr), True))
            out.append(it)
        return out

    def fold(self, items, cnt_sreg_for):
        segs = []
        cur = []; depth = None
        for it in items:
            if isinstance(it, Mark):
                if it.what == "b":
                    assert depth is None
                    if cur: segs.append(("plain", None, cur))
                    cur = []; depth = it.key
                else:
                    assert depth == it.key
                    segs.append(("blk", it.key, cur)); cur = []; depth = None
            else: cur.append(it)
        if cur: segs.append(("plain", None, cur))
        def norm(blk):
            names = {}
            res = []
            for it in blk:
                t = it.text()
                def rep(m):
                    return names.setdefault(m.group(0), f"@{len(names)}")
                res.append(re.sub(r"L_\w+", rep, t))
            return res
        out = []
        dead_labels = set()
        i = 0
        while i < len(segs):
            kind, key, blk = segs[i]
            if kind == "plain":
                out += blk; i += 1; continue
            n0 = norm(blk)
            j = i + 1
            while j < len(segs) and segs[j][0] == "blk" and segs[j][1] == key and norm(segs[j][2]) == n0:
                j += 1
            reps = j - i
            if reps == 1:
                out += blk
            else:
                sc = cnt_sreg_for(key)
                lab = self.newlabel("loop_" + str(key))
                out.append(Ins("s_mov_b32", [sc, reps]))
                out.append(Label(lab))
                out += blk
                out.append(Ins("s_sub_u32", [sc, sc, 1]))
                out.append(Ins("s_cmp_lg_u32", [sc, 0]))
                out.append(Ins("s_cbranch_scc1", [lab]))
                for k in range(i + 1, j):
                    for it in segs[k][2]:
                        for m in re.findall(r"L_\w+", it.text()): dead_labels.add(m)
                for it in blk:
                    for m in re.findall(r"L_\w+", it.text()): dead_labels.discard(m)
            print(f"  [{self.name}] block {key}: x{reps} ({len(blk)} items)")
            i = j
        return out, dead_labels

    @staticmethod
    def hazard_need(p, c):
        n = 0
        vw = {r for r in p.wr if r[0] in "va"}
        if p.kind == "valu":
            if c.kind == "mfma" and vw & c.rd: n = max(n, 2)
            if c.kind == "valu":
                if getattr(p, "trans", False) and not getattr(c, "trans", False) and vw & c.rd: n = max(n, 1)
                if getattr(p, "trans", False) and vw & c.rd: n = max(n, 1)
                if c.op.startswith("v_permlane") and vw & c.rd: n = max(n, 2)
                if (c.op.startswith("v_readfirstlane") or c.op.startswith("v_readlane")) and vw & c.rd: n = max(n, 1)
                if "dpp" in c.mods or "row_" in c.mods or "quad_perm" in c.mods:
                    if vw & c.rd: n = max(n, 2)
            sw = {r for r in p.wr if r[0] in "sx" }
            if sw:
                if c.kind == "valu" and sw & c.rd:
                    n = max(n, 4 if c.op.startswith("v_readlane") or c.op.startswith("v_writelane") else 2)
                if c.kind in ("vm_ld", "vm_lds", "vm_st") and sw & c.rd: n = max(n, 5)
                if c.kind in ("salu", "branch") and sw & c.rd: n = max(n, 1)
                if ("x", "exec") in sw and c.kind == "mfma": n = max(n, 4)
            if getattr(p, "trans", False) and c.kind in ("ds_wr", "ds_rd", "vm_st", "vm_ld", "mfma") and vw & c.rd: n = max(n, 1)
        if p.kind == "mfma":
            ps = p.passes
            t_valu = {4: 8, 8: 12}[ps]; t_c = {4: 6, 8: 10}[ps]; t_war = {4: 3, 8: 7}[ps]
            if c.kind == "mfma":
                if p.wr & (c.srcA | c.srcB): n = max(n, t_valu)
                if p.wr & c.srcC:
                    if not (p.wr == c.srcC and c.passes == ps): n = max(n, t_c)
                if p.wr & c.wr and not (p.wr == c.srcC and c.passes == ps) : n = max(n, t_c)
            elif c.kind in ("valu", "ds_rd", "ds_wr", "vm_ld", "vm_st", "vm_lds"):
                if p.wr & (c.rd | c.wr): n = max(n, t_valu)
                if c.kind == "valu" and p.srcC & c.wr: n = max(n, t_war)
        if p.kind == "salu":
            if ("x", "m0") in p.wr and c.kind == "vm_lds": n = max(n, 1)
            if ("x", "exec") in p.wr and c.kind in ("valu","mfma","ds_rd","ds_wr","vm_ld","vm_st","vm_lds"): n = max(n, 0)
        if p.kind == "vm_st" and getattr(p, "wide", False):
            if p.data & c.wr: n = max(n, 2)
        return n

    def hazards(self, items):
        MAXD = 14
        rounds = 0
        while True:
            rounds += 1
            assert rounds < 200
            lab_pos = {it.name: k for k, it in enumerate(items) if isinstance(it, Label)}
            br_to = {}
            for k, it in enumerate(items):
                if isinstance(it, Ins) and it.kind == "branch":
                    br_to.setdefault(lab_pos[it.target], []).append(k)
            def ws(it):
                if it.kind == "s_nop": return int(it.ops[0]) + 1
                return 1
            def preds(k):
                res = []
                j = k - 1
                while j >= 0:
                    it = items[j]
                    if isinstance(it, Label):
                        res += br_to.get(j, [])
                    elif isinstance(it, Ins):
                        if it.op not in ("s_branch", "s_endpgm", "s_setpc_b64"): res.append(j)
                        break
                    j -= 1
                return res
            ins_at = {}
            for k, c in enumerate(items):
                if not isinstance(c, Ins) or c.kind in ("s_nop", "s_waitcnt", "s_barrier", "s_endpgm", "s_setprio", "s_sleep"): continue
                worst = 0
                stack = [(p, 0) for p in preds(k)]
                seen = set()
                while stack:
                    pos, dist = stack.pop()
                    if dist >= MAXD or (pos, dist) in seen: continue
                    seen.add((pos, dist))
                    it = items[pos]
                    nd = self.hazard_need(it, c)
                    if nd > dist: worst = max(worst, nd - dist)
                    d2 = dist + ws(it)
                    for p in preds(pos): stack.append((p, d2))
                if worst:
                    ins_at[k] = worst
            if not ins_at: break
            new = []
            last = -100
            for k, it in enumerate(items):
                if k in ins_at and k - last > MAXD:
                    n = ins_at[k]; last = k
                    while n > 0:
                        m = min(n, 16)
                        new.append(Ins("s_nop", [m - 1], comment="hz"))
                        n -= m
                new.append(it)
            items = new
        return items

    def finalize(self, cnt_sreg_for):
        items = self.auto_wait(self.items)
        items, dead = self.fold(items, cnt_sreg_for)
        for lab, blk in self.tail:
            if lab in dead: continue
            items = items + blk
        items = self.hazards(items)
        lines = []
        for it in items:
            if isinstance(it, Label):
                if it.align: lines.append(f".p2align {it.align}")
                lines.append(it.text())
            elif isinstance(it, Raw): lines.append(it.text())
            else:
                t = "    " + it.text()
                if it.comment: t += "  ; " + it.comment
                lines.append(t)
        self.final_items = items
        return "\n".join(lines)

def kernel_text(name, body, vgpr, sgpr, accum=None):
    if accum is None: accum = (vgpr + 3) // 4 * 4
    code = f""".globl {name}
.p2align 8
.type {name},@function
{name}:
{body}
"""
    desc = f""".p2align 6
.amdhsa_kernel {name}
  .amdhsa_next_free_vgpr {vgpr}
  .amdhsa_next_free_sgpr {sgpr}
  .amdhsa_accum_offset {accum}
  .amdhsa_group_segment_fixed_size 0
  .amdhsa_kernarg_size 104
  .amdhsa_user_sgpr_count 2
  .amdhsa_user_sgpr_kernarg_segment_ptr 1
  .amdhsa_system_sgpr_workgroup_id_x 1
.end_amdhsa_kernel
"""
    return code, desc
```

```python
import sys, math
sys.path.insert(0, 'gen')
from asmlib import *

NAME = "concat_heads__gqa_block_cached__mha_block_cached__near_ridge"
MFMA = "v_mfma_f32_32x32x16_bf16"
CSCALE = math.log2(math.e) / math.sqrt(192.0)
THR = 8.0

def load_ptrs(p):
    p("s_load_dwordx16", S(16, 16), S(0, 2), 0)
    p("s_load_dwordx8", S(32, 8), S(0, 2), 64)
    p("s_load_dwordx2", S(40, 2), S(0, 2), 96)

def sel_ptr(p, dst, idx):
    p("s_cselect_b32", dst[0], S(16 + 2 * (5 + idx)), S(16 + 2 * idx))
    p("s_cselect_b32", dst[1], S(17 + 2 * (5 + idx)), S(17 + 2 * idx))

def srd(p, d, base_pair, off_sreg, nbytes):
    p("s_add_u32", d[0], base_pair[0], off_sreg)
    p("s_addc_u32", d[1], base_pair[1], 0)
    p("s_and_b32", d[1], d[1], 0xffff)
    p("s_mov_b32", d[2], nbytes)
    p("s_mov_b32", d[3], 0x20000)

def interleave(p, slots, fillers, per=None):
    n = len(slots)
    if per is None:
        per = [len(fillers) // n + (1 if i < len(fillers) % n else 0) for i in range(n)]
    k = 0
    for i, s in enumerate(slots):
        s()
        for _ in range(per[i]):
            if k < len(fillers):
                fillers[k](); k += 1
    while k < len(fillers):
        fillers[k](); k += 1

def gen_k1():
    p = Prog("k1")
    NSLOT = 6; TILE = 12288; PF = 5
    ACC = V(0, 96); Q = V(96, 48); SB = [V(144, 16), V(160, 16)]; P = V(176, 8)
    XF = [V(144, 16), V(160, 16)]
    AF = [V(184 + 4 * i, 4) for i in range(8)]
    nb = [216]
    def nv(n=1):
        r = V(nb[0], n); nb[0] += n; return r
    dK = [nv() for _ in range(3)]; dV = [nv() for _ in range(3)]; dW = [nv() for _ in range(3)]
    kb = [nv() for _ in range(4)]; vb = [nv() for _ in range(2)]
    ka = [nv() for _ in range(4)]; va = [nv() for _ in range(2)]
    xoff = nv(); ooff = nv()
    nm = nv(); thr = nv(); l0 = nv(); l1 = nv(); mx = nv(); t1 = nv(); t2 = nv(); t3 = nv(); t4 = nv()
    lane = nv(); tid = nv()
    print("k1 vgprs", nb[0])
    sX, sK, sV, sW, sO = S(44, 4), S(48, 4), S(52, 4), S(56, 4), S(60, 4)
    s_w, s_blk, s_head, s_b = S(64), S(65), S(66), S(67)
    s_rd, s_wr, s_w3072 = S(68), S(69), S(70)
    s_kof, s_vof, s_wof = S(71), S(72), S(73)
    s_c, s_invc = S(74), S(75)
    s_t0, s_t1 = S(76), S(77)
    sp = S(78, 2)
    s_loop = S(80)

    done = "L_k1_done"
    p("s_cmp_ge_u32", S(2), 1024)
    p("s_cbranch_scc1", done)
    load_ptrs(p)
    p("v_mov_b32", tid, V(0))
    p("v_and_b32", lane, 63, tid)
    p("v_lshrrev_b32", t1, 6, tid)
    p("v_readfirstlane_b32", s_w, t1)
    p("s_and_b32", s_t0, S(2), 7)
    p("s_lshr_b32", s_t1, S(2), 3)
    p("s_lshr_b32", s_blk, s_t0, 2)
    p("s_and_b32", s_t0, s_t0, 3)
    p("s_lshl_b32", s_t0, s_t0, 3)
    p("s_and_b32", s_head, s_t1, 7)
    p("s_add_u32", s_head, s_head, s_t0)
    p("s_lshr_b32", s_b, s_t1, 3)
    p("s_mul_i32", s_w3072, s_w, 3072)
    p("s_mov_b32", s_c, float(CSCALE))
    p("s_mov_b32", s_invc, float(1.0 / CSCALE))
    p("s_waitcnt", "lgkmcnt(0)")
    p("s_cmp_lg_u32", s_blk, 0)
    sel_ptr(p, sX, 0); sel_ptr(p, sK, 1); sel_ptr(p, sV, 2); sel_ptr(p, sW, 3)
    p("s_mul_i32", s_t0, s_b, 163840)
    srd(p, sX, sX, s_t0, 163840)
    p("s_lshl_b32", s_t0, s_b, 5)
    p("s_add_u32", s_t0, s_t0, s_head)
    p("s_mul_i32", s_t0, s_t0, 196608)
    srd(p, sK, sK, s_t0, 196608)
    srd(p, sV, sV, s_t0, 196608)
    p("s_mul_i32", s_t0, s_head, 384)
    p("s_sub_u32", s_t1, 640 * 12288, s_t0)
    srd(p, sW, sW, s_t0, 0)
    p("s_mov_b32", sW[2], s_t1)
    p("s_lshl_b32", s_t0, s_blk, 4)
    p("s_add_u32", s_t0, s_t0, s_b)
    p("s_lshl_b32", s_t0, s_t0, 2)
    p("s_add_u32", s_t0, s_t0, s_w)
    p("s_mul_i32", s_t0, s_t0, 384)
    p("s_mul_i32", s_t1, s_head, 12)
    p("s_add_u32", s_t0, s_t0, s_t1)
    p("s_lshl_b32", s_t0, s_t0, 10)
    srd(p, sO, S(40, 2), s_t0, 12288)
    for i in range(3):
        p("v_add_u32", t1, 64 * i, lane)
        p("v_lshrrev_b32", t2, 3, t1)
        p("v_mul_u32_u24", t2, 11, t2)
        p("v_lshrrev_b32", t2, 5, t2)
        p("v_mul_u32_u24", t3, 24, t2)
        p("v_sub_u32", t3, t1, t3)
        p("s_lshl_b32", s_t0, s_w, 3)
        p("v_add_u32", t2, s_t0, t2)
        p("v_bfe_u32", t4, t2, 1, 3)
        p("v_xor_b32", t4, t4, lane)
        p("v_lshlrev_b32", t4, 4, t4)
        p("v_add_u32", dK[i], s_w3072, t4)
        p("v_bfe_u32", t4, t2, 1, 1)
        p("v_lshlrev_b32", t4, 2, t4)
        p("v_xor_b32", t1, t4, lane)
        p("v_lshlrev_b32", t1, 4, t1)
        p("v_add_u32", dV[i], s_w3072, t1)
        p("v_xor_b32", t3, t4, t3)
        p("v_lshlrev_b32", t3, 4, t3)
        p("v_mul_u32_u24", t2, 12288, t2)
        p("v_add_u32", t3, t2, t3)
        p("v_subrev_u32", dW[i], 1024 * i, t3)
    p("v_and_b32", t1, 0x13, lane)
    p("v_bfe_u32", t2, lane, 2, 1)
    p("v_lshl_or_b32", t1, t2, 3, t1)
    p("v_bfe_u32", t2, lane, 3, 1)
    p("v_lshl_or_b32", t1, t2, 2, t1)
    p("v_bfe_u32", t2, t1, 1, 3)
    p("v_lshrrev_b32", t3, 5, lane)
    p("v_mul_u32_u24", t1, 384, t1)
    for b in range(4):
        p("v_add_u32", t4, 2 * b, t3)
        p("v_xor_b32", t4, t4, t2)
        p("v_lshl_add_u32", kb[b], t4, 4, t1)
    p("v_lshrrev_b32", t1, 5, lane)
    p("v_lshlrev_b32", t1, 3, t1)
    p("v_bfe_u32", t2, lane, 2, 2)
    p("v_add_u32", t1, t1, t2)
    p("v_mul_u32_u24", t1, 384, t1)
    p("v_bfe_u32", t2, lane, 4, 1)
    p("v_lshl_add_u32", t1, t2, 5, t1)
    p("v_and_b32", t2, 1, lane)
    p("v_lshl_add_u32", t1, t2, 4, t1)
    p("v_bfe_u32", t2, lane, 1, 1)
    p("v_lshl_add_u32", t1, t2, 3, t1)
    p("v_bfe_u32", t2, lane, 3, 1)
    p("v_lshlrev_b32", t2, 6, t2)
    p("v_add_u32", vb[0], t1, t2)
    p("v_sub_u32", vb[1], t1, t2)
    p("v_and_b32", t1, 31, lane)
    p("s_lshl_b32", s_t0, s_w, 5)
    p("v_add_u32", t1, s_t0, t1)
    p("v_mul_u32_u24", t1, 1280, t1)
    p("v_lshrrev_b32", t2, 5, lane)
    p("v_lshl_add_u32", xoff, t2, 4, t1)
    p("v_lshlrev_b32", ooff, 4, lane)
    p("v_mov_b32", nm, float(1e30))
    p("v_mov_b32", thr, float(-1e30))
    p("v_mov_b32", l0, 0)
    p("v_mov_b32", l1, 0)
    p("s_mov_b32", s_kof, 0); p("s_mov_b32", s_vof, 0); p("s_mov_b32", s_wof, 0)
    p("s_mov_b32", s_rd, 0)

    def pos_kind(n):
        if n < 20: return "W"
        if n == 20: return "K"
        return "K" if (n - 21) % 2 == 0 else "V"
    def issue_dma(n, m0src):
        k = pos_kind(n)
        d, sr, so, inc = {"W": (dW, sW, s_wof, 32 * 12288), "K": (dK, sK, s_kof, TILE), "V": (dV, sV, s_vof, TILE)}[k]
        p("s_mov_b32", M0, m0src)
        for i in range(3):
            p("buffer_load_dwordx4", d[i], sr, so, mods=f"offen offset:{1024*i} lds" if i else "offen lds", tag=("pos", n))
        p("s_add_u32", so, so, inc)
    def load_x(g):
        for i in range(4):
            p("buffer_load_dwordx4", XF[g % 2].sub(4 * i, 4), xoff, sX, 0, mods=f"offen offset:{32*(4*g+i)}")
    load_x(0)
    for n in range(PF):
        p("s_add_u32", s_t0, s_w3072, n * TILE)
        issue_dma(n, s_t0)
    p("s_add_u32", s_wr, s_w3072, (NSLOT - 1) * TILE)

    def step_begin(n, kind):
        p.wait_tag(("pos", n))
        p("s_barrier")
        if kind == "K":
            for b in range(4): p("v_add_u32", ka[b], s_rd, kb[b])
        else:
            for b in range(2): p("v_add_u32", va[b], s_rd, vb[b])
    def step_dma(n):
        issue_dma(n + PF, s_wr)
        p("s_add_u32", s_wr, s_rd, s_w3072)
        p("s_add_u32", s_rd, s_rd, TILE)
        p("s_cmp_eq_u32", s_rd, NSLOT * TILE)
        p("s_cselect_b32", s_rd, 0, s_rd)
    def rd_v(f):
        s, t = divmod(f, 6)
        for u in range(2):
            p("ds_read_b64_tr_b16", AF[f % 8].sub(2 * u, 2), va[t % 2], mods=f"offset:{(16*s+4*u)*384+64*t}")
    def rd_k(s):
        a, b = divmod(s, 4)
        p("ds_read_b128", AF[s % 8], ka[b], mods=f"offset:{128*a}")
    def v_slots(bfr, first):
        sl = []
        for f in range(12):
            def go(f=f):
                s, t = divmod(f, 6)
                c = 0 if (first and s == 0) else ACC.sub(16 * t, 16)
                p(MFMA, ACC.sub(16 * t, 16), AF[f % 8], bfr[s], c)
                if f + 7 < 12: rd_v(f + 7)
            sl.append(go)
        return sl
    def k_slots(Sd):
        sl = []
        for s in range(12):
            def go(s=s):
                p(MFMA, Sd, AF[s % 8], Q.sub(4 * s, 4), 0 if s == 0 else Sd)
                if s + 7 < 12: rd_k(s + 7)
            sl.append(go)
        return sl

    for n in range(20):
        g = n // 2
        if n % 4 == 0 and n > 0 and n + 4 <= 12: p.begin("q")
        step_begin(n, "W")
        for f in range(7): rd_v(f)
        if n % 2 == 0 and g + 1 < 10: load_x_dyn = True; load_x(g + 1)
        step_dma(n)
        bf = [XF[g % 2].sub(8 * (n % 2), 4), XF[g % 2].sub(8 * (n % 2) + 4, 4)]
        interleave(p, v_slots(bf, n == 0), [])
        if n % 4 == 3 and n > 3 and n + 1 <= 12: p.end("q")
    for i in range(48):
        p("v_cvt_pk_bf16_f32", Q[i], ACC[2 * i], ACC[2 * i + 1])

    def softmax_parts(Sd):
        A_, B_, C_ = [], [], []
        A_.append(lambda: p("v_max3_f32", mx, Sd[0], Sd[1], Sd[2]))
        for i in range(3, 15, 2):
            A_.append(lambda i=i: p("v_max3_f32", mx, mx, Sd[i], Sd[i + 1]))
        def chk():
            p("v_max_f32", mx, mx, Sd[15])
            p("v_cmp_gt_f32", VCC, mx, thr)
            lr = p.newlabel("rare"); lb = p.newlabel("back")
            p("s_cbranch_vccnz", lr)
            p.label(lb)
            sv = p.cur; blk = []; p.cur = blk
            p.label(lr)
            p("v_mov_b32", t1, mx); p("v_mov_b32", t2, mx)
            p("v_permlane32_swap_b32", t1, t2)
            p("v_max_f32", t1, t1, t2)
            p("v_mul_f32", t1, s_c, t1)
            p("v_max_f32", t1, t1, Neg(nm))
            p("v_sub_f32", t2, Neg(nm), t1)
            p("v_exp_f32", t2, t2)
            p("v_sub_f32", nm, 0, t1)
            p("v_add_f32", t1, float(THR), t1)
            p("v_mul_f32", thr, s_invc, t1)
            p("v_mul_f32", l0, l0, t2); p("v_mul_f32", l1, l1, t2)
            for i in range(96): p("v_mul_f32", ACC[i], ACC[i], t2)
            p("s_branch", lb)
            p.cur = sv
            p.tail.append((lr, blk))
        A_.append(chk)
        def ex(i):
            return [lambda: p("v_fma_f32", Sd[i], Sd[i], s_c, nm), lambda: p("v_exp_f32", Sd[i], Sd[i])]
        def cv(i):
            return [lambda: p("v_cvt_pk_bf16_f32", P[i], Sd[2 * i], Sd[2 * i + 1])]
        for h in range(2):
            L = B_ if h == 0 else C_
            fm = [ex(i)[0] for i in range(8 * h, 8 * h + 8)]
            ee = [ex(i)[1] for i in range(8 * h, 8 * h + 8)]
            L.append(fm[0])
            for i in range(8):
                if i + 1 < 8: L.append(fm[i + 1])
                L.append(ee[i])
                if i % 2 == 1 and i >= 3: L += cv(4 * h + (i - 3) // 2)
            L += cv(4 * h + 3)
        D_ = [(lambda i=i: p("v_add_f32", l0 if i % 2 == 0 else l1, l0 if i % 2 == 0 else l1, Sd[i])) for i in range(16)]
        return A_, B_, C_, D_

    step_begin(20, "K")
    for s in range(7): rd_k(s)
    step_dma(20)
    interleave(p, k_slots(SB[0]), [])
    for j in range(16):
        if j % 2 == 0 and j < 14: p.begin("a")
        A_, B_, C_, D_ = softmax_parts(SB[j % 2])
        n = 21 + 2 * j
        if j < 15:
            step_begin(n, "K")
            for s in range(7): rd_k(s)
            step_dma(n)
            fl = A_ + B_
            interleave(p, k_slots(SB[(j + 1) % 2]), fl)
        else:
            p("s_add_u32", s_wr, s_rd, s_w3072)
            p("s_add_u32", s_rd, s_rd, TILE)
            p("s_cmp_eq_u32", s_rd, NSLOT * TILE)
            p("s_cselect_b32", s_rd, 0, s_rd)
            for f in A_ + B_: f()
        step_begin(n + 1, "V")
        for f in range(7): rd_v(f)
        if j < 15: step_dma(n + 1)
        sl = v_slots([P.sub(0, 4), P.sub(4, 4)], False)
        interleave(p, sl[:6], C_)
        interleave(p, sl[6:], D_)
        if j % 2 == 1 and j < 14: p.end("a")
    p("v_add_f32", l0, l0, l1)
    p("v_mov_b32", t1, l0); p("v_mov_b32", t2, l0)
    p("v_permlane32_swap_b32", t1, t2)
    p("v_add_f32", t1, t1, t2)
    p("v_rcp_f32", t1, t1)
    for i in range(96): p("v_mul_f32", ACC[i], ACC[i], t1)
    for i in range(48): p("v_cvt_pk_bf16_f32", Q[i], ACC[2 * i], ACC[2 * i + 1])
    for s in range(12):
        if s % 4 == 0: p("s_mov_b32", s_t0, 4096 * (s // 4))
        p("buffer_store_dwordx4", Q.sub(4 * s, 4), ooff, sO, s_t0, mods=f"offen offset:{1024*(s%4)}")
    p.label(done)
    p("s_endpgm")
    body = p.finalize(lambda key: s_loop)
    return kernel_text("k1_attn_kernel", body, 256, 96, 256)

def gen_k2():
    p = Prog("k2")
    STAGE = 40960
    ACC = V(0, 80)
    AF = [V(80 + 4 * i, 4) for i in range(8)]
    BF = [V(112 + 8 * i, 8) for i in range(3)]
    nb = [136]
    def nv(n=1):
        r = V(nb[0], n); nb[0] += n; return r
    dW = [nv() for _ in range(5)]
    ab = [nv() for _ in range(3)]
    boff = nv(); t1 = nv(); t2 = nv(); t3 = nv(); lane = nv(); tid = nv(); oaddr = nv(); raddr = nv()
    RD = [V(nb[0] + (nb[0] % 2) + 4 * i, 4) for i in range(4)]; nb[0] = RD[-1].i + 4
    print("k2 vgprs", nb[0])
    sW, sB, sOut = S(44, 4), S(48, 4), S(52, 4)
    s_w, s_blk, s_qb, s_nc, s_qi, s_kh = S(64), S(65), S(66), S(67), S(68), S(69)
    s_wof, s_bof, s_w5120 = S(70), S(71), S(72)
    s_t0, s_t1 = S(76), S(77)
    s_loop = S(80)
    done = "L_k2_done"
    p("s_cmp_ge_u32", S(2), 256)
    p("s_cbranch_scc1", done)
    load_ptrs(p)
    p("v_mov_b32", tid, V(0))
    p("v_and_b32", lane, 63, tid)
    p("v_lshrrev_b32", t1, 6, tid)
    p("v_readfirstlane_b32", s_w, t1)
    p("s_and_b32", s_t0, S(2), 7)
    p("s_lshr_b32", s_t1, S(2), 3)
    p("s_lshr_b32", s_blk, s_t0, 2)
    p("s_and_b32", s_t0, s_t0, 3)
    p("s_lshl_b32", s_t0, s_t0, 3)
    p("s_lshr_b32", s_qb, s_t1, 2)
    p("s_add_u32", s_qb, s_qb, s_t0)
    p("s_and_b32", s_nc, s_t1, 3)
    p("s_and_b32", s_qi, s_w, 1)
    p("s_lshr_b32", s_kh, s_w, 1)
    p("s_mul_i32", s_w5120, s_w, 5120)
    p("s_waitcnt", "lgkmcnt(0)")
    p("s_cmp_lg_u32", s_blk, 0)
    sel_ptr(p, sW, 4)
    p("s_mul_i32", s_t0, s_nc, 320)
    p("s_sub_u32", s_t1, 6144 * 1280, s_t0)
    srd(p, sW, sW, s_t0, 0)
    p("s_mov_b32", sW[2], s_t1)
    p("s_lshl_b32", s_t0, s_blk, 6)
    p("s_lshl_b32", s_t1, s_qb, 1)
    p("s_add_u32", s_t0, s_t0, s_t1)
    p("s_add_u32", s_t0, s_t0, s_qi)
    p("s_mul_i32", s_t0, s_t0, 384 * 1024)
    srd(p, sB, S(40, 2), s_t0, 384 * 1024)
    p("s_lshl_b32", s_bof, s_kh, 11)
    p("s_lshl_b32", s_t0, s_qb, 1)
    p("s_add_u32", s_t0, s_t0, s_qi)
    p("s_mul_i32", s_t0, s_t0, 32 * 2560)
    p("s_mul_i32", s_t1, s_blk, 1280)
    p("s_add_u32", s_t0, s_t0, s_t1)
    p("s_mul_i32", s_t1, s_nc, 320)
    p("s_add_u32", s_t0, s_t0, s_t1)
    p("s_sub_u32", s_t1, 2048 * 2560, s_t0)
    srd(p, sOut, S(36, 2), s_t0, 0)
    p("s_mov_b32", sOut[2], s_t1)
    for i in range(5):
        p("v_add_u32", t1, 64 * i, lane)
        p("v_lshrrev_b32", t2, 2, t1)
        p("v_mul_u32_u24", t2, 205, t2)
        p("v_lshrrev_b32", t2, 10, t2)
        p("v_mul_u32_u24", t3, 20, t2)
        p("v_sub_u32", t3, t1, t3)
        p("s_lshl_b32", s_t0, s_w, 4)
        p("v_add_u32", t2, s_t0, t2)
        p("v_mul_u32_u24", t2, 1280, t2)
        p("v_lshl_add_u32", t2, t3, 4, t2)
        p("v_subrev_u32", dW[i], 1024 * (i % 4), t2)
    p("v_lshrrev_b32", t1, 5, lane)
    p("v_lshlrev_b32", t1, 3, t1)
    p("v_bfe_u32", t2, lane, 2, 2)
    p("v_add_u32", t1, t1, t2)
    p("s_lshl_b32", s_t0, s_kh, 5)
    p("v_add_u32", t1, s_t0, t1)
    p("v_mul_u32_u24", t1, 320, t1)
    p("v_bfe_u32", t2, lane, 4, 1)
    p("v_lshl_add_u32", t1, t2, 5, t1)
    p("v_and_b32", t2, 3, lane)
    p("v_lshl_add_u32", ab[0], t2, 3, t1)
    p("v_add_u32", ab[1], STAGE, ab[0])
    p("v_add_u32", ab[2], 2 * STAGE, ab[0])
    p("v_lshlrev_b32", boff, 4, lane)
    p("s_mov_b32", s_wof, 0)

    def issue(n):
        sl = n % 3
        p("s_add_u32", s_t0, s_w5120, sl * STAGE)
        p("s_mov_b32", M0, s_t0)
        for i in range(4):
            p("buffer_load_dwordx4", dW[i], sW, s_wof, mods=f"offen offset:{1024*i} lds" if i else "offen lds", tag=("st", n))
        p("s_add_u32", M0, s_t0, 4096)
        p("buffer_load_dwordx4", dW[4], sW, s_wof, mods="offen lds", tag=("st", n))
        p("s_add_u32", s_wof, s_wof, 128 * 1280)
        p("buffer_load_dwordx4", BF[sl].sub(0, 4), boff, sB, s_bof, mods="offen")
        p("buffer_load_dwordx4", BF[sl].sub(4, 4), boff, sB, s_bof, mods="offen offset:1024")
        p("s_add_u32", s_bof, s_bof, 8192)
    def rd(n, f):
        s, t = divmod(f, 5)
        for u in range(2):
            p("ds_read_b64_tr_b16", AF[f % 8].sub(2 * u, 2), ab[n % 3], mods=f"offset:{(16*s+4*u)*320+64*t}")
    issue(0); issue(1)
    NST = 48
    for n in range(NST):
        if n % 3 == 0 and n > 0: p.begin("g")
        p.wait_tag(("st", n))
        p("s_barrier")
        for f in range(7): rd(n, f)
        issue(n + 2)
        for f in range(10):
            s, t = divmod(f, 5)
            c = 0 if (n == 0 and s == 0) else ACC.sub(16 * t, 16)
            p(MFMA, ACC.sub(16 * t, 16), AF[f % 8], BF[n % 3].sub(4 * s, 4), c)
            if f + 7 < 10: rd(n, f + 7)
        if n % 3 == 2 and n > 2: p.end("g")
    p("s_waitcnt", "vmcnt(0)")
    p("s_barrier")
    p("s_mul_i32", s_t0, s_w, 20480)
    p("v_add_u32", t1, s_t0, boff)
    for u in range(20):
        p("ds_write_b128", t1, ACC.sub(4 * u, 4), mods=f"offset:{1024*u}")
    p.wait_lds()
    p("s_barrier")
    p("s_mul_i32", s_t0, s_qi, 20480)
    p("s_mul_i32", s_t1, s_kh, 5120)
    p("s_add_u32", s_t0, s_t0, s_t1)
    p("v_add_u32", raddr, s_t0, boff)
    p("v_add_u32", t3, 81920, raddr)
    p("v_and_b32", t1, 31, lane)
    p("v_mul_u32_u24", t1, 2560, t1)
    p("v_lshrrev_b32", t2, 5, lane)
    p("v_lshl_add_u32", oaddr, t2, 3, t1)
    for i in range(5):
        R = [V(4 * (4 * i + k), 4) for k in range(4)]
        for k in range(4):
            p("ds_read_b128", R[k], raddr if k < 2 else t3, mods=f"offset:{(k%2)*40960 + 1024*i}")
    for i in range(5):
        R = [V(4 * (4 * i + k), 4) for k in range(4)]
        for e in range(4):
            p("v_add_f32", R[0][e], R[0][e], R[1][e])
            p("v_add_f32", R[2][e], R[2][e], R[3][e])
            p("v_add_f32", R[0][e], R[0][e], R[2][e])
        p("v_cvt_pk_bf16_f32", R[1][0], R[0][0], R[0][1])
        p("v_cvt_pk_bf16_f32", R[1][1], R[0][2], R[0][3])
        p("s_mul_i32", s_t0, s_kh, 80)
        p("buffer_store_dwordx2", R[1].sub(0, 2), oaddr, sOut, s_t0, mods=f"offen offset:{16*i}")
    p.label(done)
    p("s_endpgm")
    body = p.finalize(lambda key: s_loop)
    return kernel_text("k2_oproj_kernel", body, 168, 96, 168)

def main(out):
    hdr = open(f"cdna_kernels/{NAME}.s.ref").read().split("; Override launch")[0]
    c1, d1 = gen_k1()
    c2, d2 = gen_k2()
    txt = hdr
    txt += "; @launch kernel=k1_attn_kernel grid=(1024,1,1) block=(256,1,1) lds=73728\n"
    txt += "; @launch kernel=k2_oproj_kernel grid=(256,1,1) block=(512,1,1) lds=163840\n"
    txt += '.amdgcn_target "amdgcn-amd-amdhsa--gfx950"\n.text\n'
    txt += c1 + c2
    txt += '.section .rodata,"a"\n' + d1 + d2
    open(out, "w").write(txt)

if __name__ == "__main__":
    main(sys.argv[1] if len(sys.argv) > 1 else f"cdna_kernels/{NAME}.s")
```

```python
import re

class Reg:
    __slots__ = ("k", "i", "n")
    def __init__(self, k, i, n=1):
        self.k, self.i, self.n = k, i, n
    def __str__(self):
        if self.n == 1:
            return f"{self.k}{self.i}"
        return f"{self.k}[{self.i}:{self.i+self.n-1}]"
    __repr__ = __str__
    def regs(self):
        return {(self.k, self.i + j) for j in range(self.n)}
    def __getitem__(self, idx):
        if isinstance(idx, slice):
            a = idx.start or 0
            b = idx.stop if idx.stop is not None else self.n
            assert 0 <= a < b <= self.n, (self, idx)
            return Reg(self.k, self.i + a, b - a)
        assert 0 <= idx < self.n, (self, idx)
        return Reg(self.k, self.i + idx, 1)
    def sub(self, off, n=1):
        assert 0 <= off and off + n <= self.n, (self, off, n)
        return Reg(self.k, self.i + off, n)

def V(i, n=1): return Reg("v", i, n)
def S(i, n=1): return Reg("s", i, n)
def A(i, n=1): return Reg("a", i, n)

class Neg:
    def __init__(self, r): self.r = r
    def __str__(self): return f"-{self.r}"

VCC = "vcc"; M0 = "m0"; EXEC = "exec"; SCC = "scc"
SPECIAL = {"vcc": {("x", "vcc")}, "m0": {("x", "m0")}, "exec": {("x", "exec")}}

TRANS = ("v_exp_f32", "v_log_f32", "v_rcp_f32", "v_rsq_f32", "v_sqrt_f32", "v_sin_f32", "v_cos_f32")

def opregs(o):
    if isinstance(o, Reg): return o.regs()
    if isinstance(o, Neg): return opregs(o.r)
    if isinstance(o, str) and o in SPECIAL: return set(SPECIAL[o])
    return set()

def fmt(o):
    if isinstance(o, float):
        import struct
        return "0x%08x" % struct.unpack("<I", struct.pack("<f", o))[0]
    if isinstance(o, int):
        if -16 <= o <= 64: return str(o)
        return hex(o & 0xffffffff)
    return str(o)

class Ins:
    def __init__(self, op, ops=(), mods="", tag=None, comment=None):
        self.op, self.ops, self.mods, self.tag, self.comment = op, list(ops), mods, tag, comment
        self.rd, self.wr = set(), set()
        self.kind = None
        self.target = None
        self.classify()
    def text(self):
        s = self.op
        if self.ops: s += " " + ", ".join(fmt(o) for o in self.ops)
        if self.mods: s += " " + self.mods
        return s
    def classify(self):
        op, o = self.op, self.ops
        R = lambda *xs: set().union(*[opregs(x) for x in xs]) if xs else set()
        self.srcA = self.srcB = self.srcC = set()
        if op.startswith("v_mfma"):
            self.kind = "mfma"
            self.wr = R(o[0]); self.srcA = R(o[1]); self.srcB = R(o[2]); self.srcC = R(o[3])
            self.rd = self.srcA | self.srcB | self.srcC
            self.passes = 8 if "32x32x16" in op else 4 if "16x16x32" in op else None
            assert self.passes
        elif op.startswith("ds_read") or op.startswith("ds_bpermute") or op.startswith("ds_swizzle"):
            self.kind = "ds_rd"; self.wr = R(o[0]); self.rd = R(*o[1:])
        elif op.startswith("ds_write"):
            self.kind = "ds_wr"; self.rd = R(*o)
        elif op.startswith("ds_add_rtn") :
            self.kind = "ds_rd"; self.wr = R(o[0]); self.rd = R(*o[1:])
        elif op.startswith("ds_add"):
            self.kind = "ds_wr"; self.rd = R(*o)
        elif op.startswith("buffer_load") or op.startswith("global_load"):
            if " lds" in (" " + self.mods) or "_lds_" in op:
                self.kind = "vm_lds"; self.rd = R(*o) | R("m0")
            else:
                self.kind = "vm_ld"; self.wr = R(o[0]); self.rd = R(*o[1:])
        elif op.startswith("buffer_store") or op.startswith("global_store"):
            self.kind = "vm_st"; self.rd = R(*o)
            self.wide = ("x4" in op or "x3" in op)
            self.data = R(o[0]) if op.startswith("buffer") else R(o[1])
        elif op.startswith("buffer_atomic") or op.startswith("global_atomic"):
            ret = "sc0" in self.mods.split()
            if op.startswith("buffer"):
                self.kind = "vm_ld" if ret else "vm_st"
                self.rd = R(*o); self.wr = R(o[0]) if ret else set()
            else:
                self.kind = "vm_ld" if ret else "vm_st"
                if ret: self.wr = R(o[0]); self.rd = R(*o[1:])
                else: self.rd = R(*o)
            self.wide = False; self.data = set()
        elif op in ("buffer_wbl2", "buffer_inv"):
            self.kind = "vm_st"; self.wide = False; self.data = set()
        elif op.startswith("s_load") or op.startswith("s_memtime") or op.startswith("s_memrealtime"):
            self.kind = "smem"; self.wr = R(o[0]); self.rd = R(*o[1:])
        elif op in ("s_waitcnt", "s_barrier", "s_nop", "s_setprio", "s_endpgm", "s_sleep"):
            self.kind = op
        elif op.startswith("s_cbranch") or op == "s_branch":
            self.kind = "branch"; self.target = o[0]
            if "vcc" in op: self.rd = R("vcc")
            if "exec" in op: self.rd = R("exec")
        elif op.startswith("s_cmp") or op.startswith("s_bitcmp"):
            self.kind = "salu"; self.rd = R(*o)
        elif op.startswith("s_"):
            self.kind = "salu"; self.wr = R(o[0]); self.rd = R(*o[1:])
            if op in ("s_addk_i32", "s_mulk_i32"): self.rd |= R(o[0])
            if "saveexec" in op: self.wr |= R("exec"); self.rd |= R("exec")
        elif op.startswith("v_"):
            self.kind = "valu"
            if op.startswith("v_cmp"):
                self.wr = R(o[0]); self.rd = R(*o[1:])
            elif op.startswith("v_permlane") and "swap" in op:
                self.wr = R(o[0], o[1]); self.rd = R(o[0], o[1])
            elif op.startswith("v_add_co") or op.startswith("v_sub_co") or op.startswith("v_addc_co"):
                self.wr = R(o[0], o[1]); self.rd = R(*o[2:])
            else:
                self.wr = R(o[0]); self.rd = R(*o[1:])
                if op.startswith("v_fmac") or op.startswith("v_mac") or op.startswith("v_dot2c") or op.startswith("v_pk_fmac"):
                    self.rd |= R(o[0])
                if op.startswith("v_cndmask") and len(o) == 3: self.rd |= R("vcc")
            self.trans = op.split("_e")[0] in TRANS or op in TRANS
        else:
            raise ValueError("unknown op " + op)

class Label:
    def __init__(self, name, align=None): self.name = name; self.align = align
    def text(self): return self.name + ":"

class Mark:
    def __init__(self, what, key): self.what, self.key = what, key

class WaitTag:
    def __init__(self, tags): self.tags = tags

class WaitLds:
    pass

class WaitRegs:
    def __init__(self, regs):
        self.rd = set().union(*[r.regs() for r in regs]); self.wr = set()

class Raw:
    def __init__(self, t): self.t = t
    def text(self): return self.t

class Prog:
    def __init__(self, name):
        self.name = name
        self.items = []
        self.tail = []
        self.uid = 0
        self.cur = self.items
    def __call__(self, op, *ops, mods="", tag=None, comment=None):
        i = Ins(op, ops, mods, tag, comment)
        self.cur.append(i)
        return i
    def label(self, name, align=None): self.cur.append(Label(name, align))
    def raw(self, t): self.cur.append(Raw(t))
    def newlabel(self, base):
        self.uid += 1
        return f"L_{self.name}_{base}_{self.uid}"
    def begin(self, key): self.cur.append(Mark("b", key))
    def end(self, key): self.cur.append(Mark("e", key))
    def wait_tag(self, *tags): self.cur.append(WaitTag(set(tags)))
    def wait_lds(self): self.cur.append(WaitLds())
    def wait_regs(self, *regs): self.cur.append(WaitRegs(regs))

    def auto_wait(self, items):
        out = []
        vm = []
        lg = []
        def need(ins):
            nv = nl = None
            touched = ins.rd | ins.wr
            for idx, (d, t) in enumerate(vm):
                if d & touched: nv = len(vm) - 1 - idx
            for idx, (d, sm) in enumerate(lg):
                if d & touched:
                    nl = len(lg) - 1 - idx
            if nl is not None and any(sm for _, sm in lg): nl = 0
            return nv, nl
        def emit_wait(nv, nl):
            parts = []
            if nv is not None:
                assert nv <= 63, nv
                parts.append(f"vmcnt({nv})"); del vm[:len(vm) - nv]
            if nl is not None:
                if nl > 15: nl = 15
                parts.append(f"lgkmcnt({nl})"); del lg[:len(lg) - nl]
            if parts: out.append(Ins("s_waitcnt", [" ".join(parts)]))
        for it in items:
            if isinstance(it, WaitTag):
                nv = None
                for idx, (d, t) in enumerate(vm):
                    if t in it.tags: nv = len(vm) - 1 - idx
                emit_wait(nv, None)
                continue
            if isinstance(it, WaitLds):
                if lg: emit_wait(None, 0)
                continue
            if isinstance(it, WaitRegs):
                nv, nl = need(it)
                emit_wait(nv, nl)
                continue
            if isinstance(it, Ins):
                if it.kind == "s_waitcnt":
                    m = re.search(r"vmcnt\((\d+)\)", it.ops[0])
                    if m:
                        n = int(m.group(1)); del vm[:max(0, len(vm) - n)]
                    m = re.search(r"lgkmcnt\((\d+)\)", it.ops[0])
                    if m:
                        n = int(m.group(1)); del lg[:max(0, len(lg) - n)]
                    out.append(it); continue
                nv, nl = need(it)
                if it.kind in ("vm_ld", "vm_lds", "vm_st") and len(vm) >= 63:
                    nv = 62 if nv is None else min(nv, 62)
                emit_wait(nv, nl)
                if it.kind in ("vm_ld", "vm_lds", "vm_st"):
                    vm.append((set(it.wr), it.tag))
                    assert len(vm) <= 63, "too many vmem outstanding"
                elif it.kind in ("ds_rd", "ds_wr"):
                    lg.append((set(it.wr), False))
                elif it.kind == "smem":
                    lg.append((set(it.wr), True))
            out.append(it)
        return out

    def fold(self, items, cnt_sreg_for):
        segs = []
        cur = []; depth = None
        for it in items:
            if isinstance(it, Mark):
                if it.what == "b":
                    assert depth is None
                    if cur: segs.append(("plain", None, cur))
                    cur = []; depth = it.key
                else:
                    assert depth == it.key
                    segs.append(("blk", it.key, cur)); cur = []; depth = None
            else: cur.append(it)
        if cur: segs.append(("plain", None, cur))
        def norm(blk):
            names = {}
            res = []
            for it in blk:
                t = it.text()
                def rep(m):
                    return names.setdefault(m.group(0), f"@{len(names)}")
                res.append(re.sub(r"L_\w+", rep, t))
            return res
        out = []
        dead_labels = set()
        i = 0
        while i < len(segs):
            kind, key, blk = segs[i]
            if kind == "plain":
                out += blk; i += 1; continue
            n0 = norm(blk)
            j = i + 1
            while j < len(segs) and segs[j][0] == "blk" and segs[j][1] == key and norm(segs[j][2]) == n0:
                j += 1
            reps = j - i
            if reps == 1:
                out += blk
            else:
                sc = cnt_sreg_for(key)
                lab = self.newlabel("loop_" + str(key))
                out.append(Ins("s_mov_b32", [sc, reps]))
                out.append(Label(lab))
                out += blk
                out.append(Ins("s_sub_u32", [sc, sc, 1]))
                out.append(Ins("s_cmp_lg_u32", [sc, 0]))
                out.append(Ins("s_cbranch_scc1", [lab]))
                for k in range(i + 1, j):
                    for it in segs[k][2]:
                        for m in re.findall(r"L_\w+", it.text()): dead_labels.add(m)
                for it in blk:
                    for m in re.findall(r"L_\w+", it.text()): dead_labels.discard(m)
            print(f"  [{self.name}] block {key}: x{reps} ({len(blk)} items)")
            i = j
        return out, dead_labels

    def fold2(self, items, sc):
        segs = []; cur = []; depth = None
        for it in items:
            if isinstance(it, Mark):
                if it.what == "b":
                    assert depth is None
                    if cur: segs.append((None, cur))
                    cur = []; depth = it.key
                else:
                    assert depth == it.key
                    segs.append((it.key, cur)); cur = []; depth = None
            else: cur.append(it)
        if cur: segs.append((None, cur))
        def norm(blk):
            names = {}; res = []
            for it in blk:
                def rep(m): return names.setdefault(m.group(0), f"@{len(names)}")
                res.append(re.sub(r"L_\w+_u\d+", rep, it.text()))
            return res
        keys = [k for k, _ in segs]
        i0 = keys.index("B1"); i1 = len(keys) - 1 - keys[::-1].index("B1")
        body = segs[i0:i1 + 1]
        assert [k for k, _ in body] == ["B1", "B2"] * (len(body) // 2) + ["B1"], [k for k, _ in body]
        ok = True
        for key in ("B1", "B2"):
            bl = [b for k, b in body if k == key]
            n0 = norm(bl[0])
            for j, b in enumerate(bl[1:]):
                n1 = norm(b)
                if n1 != n0:
                    ok = False
                    d = next((x for x in range(min(len(n0), len(n1))) if n0[x] != n1[x]), min(len(n0), len(n1)))
                    print(f"  FOLD MISMATCH {key} copy {j+1} at item {d}/{len(n0)}/{len(n1)}:")
                    for x in range(max(0, d - 6), min(d + 6, len(n0), len(n1))):
                        print(f"     {n0[x]:70s} | {n1[x]}")
        assert ok, "fold2 mismatch"
        n = len(body) // 2 + 1
        print(f"  [{self.name}] fold2: B1 x{n} ({len(body[0][1])} items), B2 x{n-1} ({len(body[1][1])} items)")
        dead = set()
        for k, b in body[2:]:
            for it in b:
                for m in re.findall(r"L_\w+_u\d+", it.text()): dead.add(m)
        out = []
        for k, b in segs[:i0]: out += b
        out.append(Label("L_%s_loop" % self.name))
        out += body[0][1]
        out.append(Ins("s_cmp_eq_u32", [sc, n - 1]))
        out.append(Ins("s_cbranch_scc1", ["L_%s_exit" % self.name]))
        out += body[1][1]
        out.append(Ins("s_add_u32", [sc, sc, 1]))
        out.append(Ins("s_branch", ["L_%s_loop" % self.name]))
        out.append(Label("L_%s_exit" % self.name))
        for k, b in segs[i1 + 1:]: out += b
        return out, dead

    def ulabel(self, base):
        self.uid += 1
        return f"L_{self.name}_{base}_u{self.uid}"

    @staticmethod
    def hazard_need(p, c):
        n = 0
        vw = {r for r in p.wr if r[0] in "va"}
        if p.kind == "valu":
            if c.kind == "mfma" and vw & c.rd: n = max(n, 2)
            if c.kind == "valu":
                if getattr(p, "trans", False) and not getattr(c, "trans", False) and vw & c.rd: n = max(n, 1)
                if getattr(p, "trans", False) and vw & c.rd: n = max(n, 1)
                if c.op.startswith("v_permlane") and vw & c.rd: n = max(n, 2)
                if (c.op.startswith("v_readfirstlane") or c.op.startswith("v_readlane")) and vw & c.rd: n = max(n, 1)
                if "dpp" in c.mods or "row_" in c.mods or "quad_perm" in c.mods:
                    if vw & c.rd: n = max(n, 2)
            sw = {r for r in p.wr if r[0] in "sx" }
            if sw:
                if c.kind == "valu" and sw & c.rd:
                    n = max(n, 4 if c.op.startswith("v_readlane") or c.op.startswith("v_writelane") else 2)
                if c.kind in ("vm_ld", "vm_lds", "vm_st") and sw & c.rd: n = max(n, 5)
                if c.kind in ("salu", "branch") and sw & c.rd: n = max(n, 1)
                if ("x", "exec") in sw and c.kind == "mfma": n = max(n, 4)
            if getattr(p, "trans", False) and c.kind in ("ds_wr", "ds_rd", "vm_st", "vm_ld", "mfma") and vw & c.rd: n = max(n, 1)
        if p.kind == "mfma":
            ps = p.passes
            t_valu = {4: 8, 8: 12}[ps]; t_c = {4: 6, 8: 10}[ps]; t_war = {4: 3, 8: 7}[ps]
            if c.kind == "mfma":
                if p.wr & (c.srcA | c.srcB): n = max(n, t_valu)
                if p.wr & c.srcC:
                    if not (p.wr == c.srcC and c.passes == ps): n = max(n, t_c)
                if p.wr & c.wr and not (p.wr == c.srcC and c.passes == ps) : n = max(n, t_c)
            elif c.kind in ("valu", "ds_rd", "ds_wr", "vm_ld", "vm_st", "vm_lds"):
                if p.wr & (c.rd | c.wr): n = max(n, t_valu)
                if c.kind == "valu" and p.srcC & c.wr: n = max(n, t_war)
        if p.kind == "salu":
            if ("x", "m0") in p.wr and c.kind == "vm_lds": n = max(n, 1)
            if ("x", "exec") in p.wr and c.kind in ("valu","mfma","ds_rd","ds_wr","vm_ld","vm_st","vm_lds"): n = max(n, 0)
        if p.kind == "vm_st" and getattr(p, "wide", False):
            if p.data & c.wr: n = max(n, 2)
        return n

    def hazards(self, items):
        MAXD = 14
        rounds = 0
        while True:
            rounds += 1
            assert rounds < 200
            lab_pos = {it.name: k for k, it in enumerate(items) if isinstance(it, Label)}
            br_to = {}
            for k, it in enumerate(items):
                if isinstance(it, Ins) and it.kind == "branch":
                    br_to.setdefault(lab_pos[it.target], []).append(k)
            def ws(it):
                if it.kind == "s_nop": return int(it.ops[0]) + 1
                return 1
            def preds(k):
                res = []
                j = k - 1
                while j >= 0:
                    it = items[j]
                    if isinstance(it, Label):
                        res += br_to.get(j, [])
                    elif isinstance(it, Ins):
                        if it.op not in ("s_branch", "s_endpgm", "s_setpc_b64"): res.append(j)
                        break
                    j -= 1
                return res
            ins_at = {}
            for k, c in enumerate(items):
                if not isinstance(c, Ins) or c.kind in ("s_nop", "s_waitcnt", "s_barrier", "s_endpgm", "s_setprio", "s_sleep"): continue
                worst = 0
                stack = [(p, 0) for p in preds(k)]
                seen = set()
                while stack:
                    pos, dist = stack.pop()
                    if dist >= MAXD or (pos, dist) in seen: continue
                    seen.add((pos, dist))
                    it = items[pos]
                    nd = self.hazard_need(it, c)
                    if nd > dist: worst = max(worst, nd - dist)
                    d2 = dist + ws(it)
                    for p in preds(pos): stack.append((p, d2))
                if worst:
                    ins_at[k] = worst
            if not ins_at: break
            new = []
            last = -100
            for k, it in enumerate(items):
                if k in ins_at and k - last > MAXD:
                    n = ins_at[k]; last = k
                    while n > 0:
                        m = min(n, 16)
                        new.append(Ins("s_nop", [m - 1], comment="hz"))
                        n -= m
                new.append(it)
            items = new
        return items

    def finalize(self, cnt_sreg_for, fold2=None, compact=False):
        items = self.auto_wait(self.items)
        if fold2 is not None: items, dead = self.fold2(items, fold2)
        else: items, dead = self.fold(items, cnt_sreg_for)
        for lab, blk in self.tail:
            if lab in dead: continue
            items = items + blk
        items = self.hazards(items)
        lines = []
        for it in items:
            if isinstance(it, Label):
                if it.align: lines.append(f".p2align {it.align}")
                lines.append(it.text())
            elif isinstance(it, Raw): lines.append(it.text())
            else:
                t = (compact_text(it) if compact else None) or "    " + it.text()
                if it.comment and not compact: t += "  ; " + it.comment
                lines.append(t)
        self.final_items = items
        return "\n".join(lines)

USED_MACROS = {}
def compact_text(it):
    o = it.ops
    if it.op == "v_mfma_f32_16x16x32_bf16":
        d, a, b, c = o
        cls = d.k + a.k + b.k
        R = lambda k, x: f"{k}[\\{x}:\\{x}+3]"
        if isinstance(c, Reg) and c.i == d.i and c.k == d.k:
            nm = "m" + cls; USED_MACROS[nm] = ("d,a,b", f"{it.op} {R(d.k,'d')}, {R(a.k,'a')}, {R(b.k,'b')}, {R(d.k,'d')}")
            return f"{nm} {d.i},{a.i},{b.i}"
        if c == 0:
            nm = "z" + cls; USED_MACROS[nm] = ("d,a,b", f"{it.op} {R(d.k,'d')}, {R(a.k,'a')}, {R(b.k,'b')}, 0")
            return f"{nm} {d.i},{a.i},{b.i}"
        nm = "c" + cls; USED_MACROS[nm] = ("d,a,b,c", f"{it.op} {R(d.k,'d')}, {R(a.k,'a')}, {R(b.k,'b')}, {R(d.k,'c')}")
        return f"{nm} {d.i},{a.i},{b.i},{c.i}"
    if it.op in ("ds_read_b64_tr_b16", "ds_read_b128"):
        d, a = o
        m = re.fullmatch(r"offset:(\d+)", it.mods)
        if m:
            nm = ("tr" if "tr" in it.op else "rq") + d.k
            USED_MACROS[nm] = ("d,a,f", f"{it.op} {d.k}[\\d:\\d+{d.n-1}], v\\a offset:\\f")
            return f"{nm} {d.i},{a.i},{m.group(1)}"
    if it.op == "s_waitcnt":
        m = re.fullmatch(r"lgkmcnt\((\d+)\)", o[0])
        if m:
            USED_MACROS["wl"] = ("n", "s_waitcnt lgkmcnt(\\n)")
            return f"wl {m.group(1)}"
    if it.op == "v_exp_f32" and o[0].i == getattr(o[1], "i", None) and not it.mods:
        USED_MACROS["ex"] = ("d", "v_exp_f32 v\\d, v\\d")
        return f"ex {o[0].i}"
    if it.op == "v_cvt_pk_bf16_f32" and o[2].i == o[1].i + 1:
        USED_MACROS["cv"] = ("d,a", "v_cvt_pk_bf16_f32 v\\d, v\\a, v[\\a+1]")
        return f"cv {o[0].i},{o[1].i}"
    return it.text()

def macro_defs():
    return "".join(f".macro {n} {a}\n {b}\n.endm\n" for n, (a, b) in sorted(USED_MACROS.items()))

def kernel_text(name, body, vgpr, sgpr, accum=None):
    if accum is None: accum = (vgpr + 3) // 4 * 4
    code = f""".globl {name}
.p2align 8
.type {name},@function
{name}:
{body}
"""
    desc = f""".p2align 6
.amdhsa_kernel {name}
  .amdhsa_next_free_vgpr {vgpr}
  .amdhsa_next_free_sgpr {sgpr}
  .amdhsa_accum_offset {accum}
  .amdhsa_group_segment_fixed_size 0
  .amdhsa_kernarg_size 104
  .amdhsa_user_sgpr_count 2
  .amdhsa_user_sgpr_kernarg_segment_ptr 1
  .amdhsa_system_sgpr_workgroup_id_x 1
.end_amdhsa_kernel
"""
    return code, desc
```

```python
import sys, math
sys.path.insert(0, 'gen')
from asmlib import *

NAME = "concat_heads__gqa_block_cached__mha_block_cached__near_ridge"
MFMA = "v_mfma_f32_32x32x16_bf16"
CSCALE = math.log2(math.e) / math.sqrt(192.0)
THR = 8.0

def load_ptrs(p):
    p("s_load_dwordx16", S(16, 16), S(0, 2), 0)
    p("s_load_dwordx8", S(32, 8), S(0, 2), 64)
    p("s_load_dwordx2", S(40, 2), S(0, 2), 96)

def sel_ptr(p, dst, idx):
    p("s_cselect_b32", dst[0], S(16 + 2 * (5 + idx)), S(16 + 2 * idx))
    p("s_cselect_b32", dst[1], S(17 + 2 * (5 + idx)), S(17 + 2 * idx))

def srd(p, d, base_pair, off_sreg, nbytes):
    p("s_add_u32", d[0], base_pair[0], off_sreg)
    p("s_addc_u32", d[1], base_pair[1], 0)
    p("s_and_b32", d[1], d[1], 0xffff)
    p("s_mov_b32", d[2], nbytes)
    p("s_mov_b32", d[3], 0x20000)

STAMP = False
NOQ = False
NOCOMP = False
NT = False
NOSWZ = False
K1ONLY = False
def stamp(p, idx, sT, nwg_off=0):
    if not STAMP: return
    p("s_memrealtime", S(84, 2))
    p("s_waitcnt", "lgkmcnt(0)")
    p("v_mov_b32", V(254), S(84)); p("v_mov_b32", V(255), S(85))
    p("s_lshl_b32", S(86), S(2), 7)
    p("s_add_u32", S(86), S(86), 0x4000000 + nwg_off + idx * 8)
    p("v_mov_b32", V(253), S(86))
    p("global_store_dwordx2", V(253), V(254, 2), S(40, 2))

def interleave(p, slots, fillers, per=None):
    if NOCOMP: return
    n = len(slots)
    if per is None:
        per = [len(fillers) // n + (1 if i < len(fillers) % n else 0) for i in range(n)]
    k = 0
    for i, s in enumerate(slots):
        s()
        for _ in range(per[i]):
            if k < len(fillers):
                fillers[k](); k += 1
    while k < len(fillers):
        fillers[k](); k += 1

def gen_k1():
    p = Prog("k1")
    NSLOT = 6; TILE = 12288; PF = 5
    ACC = V(0, 96); Q = V(96, 48); SB = [V(144, 16), V(160, 16)]; P = V(176, 8)
    XF = [V(144, 16), V(160, 16)]
    AF = [V(184 + 4 * i, 4) for i in range(8)]
    nb = [216]
    def nv(n=1):
        r = V(nb[0], n); nb[0] += n; return r
    dK = [nv() for _ in range(3)]; dV = [nv() for _ in range(3)]; dW = [nv() for _ in range(3)]
    kb = [nv() for _ in range(4)]; vb = [nv() for _ in range(2)]
    ka = [nv() for _ in range(4)]; va = [nv() for _ in range(2)]
    xoff = nv(); ooff = nv()
    nm = nv(); thr = nv(); l0 = nv(); l1 = nv(); mx = nv(); t1 = nv(); t2 = nv(); t3 = nv(); t4 = nv()
    lane = nv(); tid = nv()
    print("k1 vgprs", nb[0])
    sX, sK, sV, sW, sO = S(44, 4), S(48, 4), S(52, 4), S(56, 4), S(60, 4)
    s_w, s_blk, s_head, s_b = S(64), S(65), S(66), S(67)
    s_rd, s_wr, s_w3072 = S(68), S(69), S(70)
    s_kof, s_vof, s_wof = S(71), S(72), S(73)
    s_c, s_invc = S(74), S(75)
    s_t0, s_t1 = S(76), S(77)
    sp = S(78, 2)
    s_loop = S(80)

    done = "L_k1_done"
    p("s_cmp_ge_u32", S(2), 1024)
    p("s_cbranch_scc1", done)
    load_ptrs(p)
    p("v_mov_b32", tid, V(0))
    p("v_and_b32", lane, 63, tid)
    p("v_lshrrev_b32", t1, 6, tid)
    p("v_readfirstlane_b32", s_w, t1)
    p("s_and_b32", s_t0, S(2), 7)
    p("s_lshr_b32", s_t1, S(2), 3)
    p("s_lshr_b32", s_blk, s_t0, 2)
    p("s_and_b32", s_t0, s_t0, 3)
    p("s_lshl_b32", s_t0, s_t0, 3)
    p("s_and_b32", s_head, s_t1, 7)
    p("s_add_u32", s_head, s_head, s_t0)
    p("s_lshr_b32", s_b, s_t1, 3)
    p("s_mul_i32", s_w3072, s_w, 3072)
    p("s_mov_b32", s_c, float(CSCALE))
    p("s_mov_b32", s_invc, float(1.0 / CSCALE))
    p("s_waitcnt", "lgkmcnt(0)")
    p("s_cmp_lg_u32", s_blk, 0)
    sel_ptr(p, sX, 0); sel_ptr(p, sK, 1); sel_ptr(p, sV, 2); sel_ptr(p, sW, 3)
    p("s_mul_i32", s_t0, s_b, 163840)
    srd(p, sX, sX, s_t0, 163840)
    p("s_lshl_b32", s_t0, s_b, 5)
    p("s_add_u32", s_t0, s_t0, s_head)
    p("s_mul_i32", s_t0, s_t0, 196608)
    srd(p, sK, sK, s_t0, 196608)
    srd(p, sV, sV, s_t0, 196608)
    p("s_mul_i32", s_t0, s_head, 384)
    p("s_sub_u32", s_t1, 640 * 12288, s_t0)
    srd(p, sW, sW, s_t0, 0)
    p("s_mov_b32", sW[2], s_t1)
    p("s_lshl_b32", s_t0, s_blk, 4)
    p("s_add_u32", s_t0, s_t0, s_b)
    p("s_lshl_b32", s_t0, s_t0, 2)
    p("s_add_u32", s_t0, s_t0, s_w)
    p("s_mul_i32", s_t0, s_t0, 384)
    p("s_mul_i32", s_t1, s_head, 12)
    p("s_add_u32", s_t0, s_t0, s_t1)
    p("s_lshl_b32", s_t0, s_t0, 10)
    srd(p, sO, S(40, 2), s_t0, 12288)
    for i in range(3):
        p("v_add_u32", t1, 64 * i, lane)
        p("v_lshrrev_b32", t2, 3, t1)
        p("v_mul_u32_u24", t2, 11, t2)
        p("v_lshrrev_b32", t2, 5, t2)
        p("v_mul_u32_u24", t3, 24, t2)
        p("v_sub_u32", t3, t1, t3)
        p("s_lshl_b32", s_t0, s_w, 3)
        p("v_add_u32", t2, s_t0, t2)
        p("v_bfe_u32", t4, t2, 1, 3)
        if NOSWZ: p("v_mov_b32", t4, 0)
        p("v_xor_b32", t4, t4, lane)
        p("v_lshlrev_b32", t4, 4, t4)
        p("v_add_u32", dK[i], s_w3072, t4)
        p("v_bfe_u32", t4, t2, 1, 1)
        p("v_lshlrev_b32", t4, 2, t4)
        if NOSWZ: p("v_mov_b32", t4, 0)
        p("v_xor_b32", t1, t4, lane)
        p("v_lshlrev_b32", t1, 4, t1)
        p("v_add_u32", dV[i], s_w3072, t1)
        p("v_xor_b32", t3, t4, t3)
        p("v_lshlrev_b32", t3, 4, t3)
        p("v_mul_u32_u24", t2, 12288, t2)
        p("v_add_u32", t3, t2, t3)
        p("v_subrev_u32", dW[i], 1024 * i, t3)
    p("v_and_b32", t1, 0x13, lane)
    p("v_bfe_u32", t2, lane, 2, 1)
    p("v_lshl_or_b32", t1, t2, 3, t1)
    p("v_bfe_u32", t2, lane, 3, 1)
    p("v_lshl_or_b32", t1, t2, 2, t1)
    p("v_bfe_u32", t2, t1, 1, 3)
    p("v_lshrrev_b32", t3, 5, lane)
    p("v_mul_u32_u24", t1, 384, t1)
    for b in range(4):
        p("v_add_u32", t4, 2 * b, t3)
        p("v_xor_b32", t4, t4, t2)
        p("v_lshl_add_u32", kb[b], t4, 4, t1)
    p("v_lshrrev_b32", t1, 5, lane)
    p("v_lshlrev_b32", t1, 3, t1)
    p("v_bfe_u32", t2, lane, 2, 2)
    p("v_add_u32", t1, t1, t2)
    p("v_mul_u32_u24", t1, 384, t1)
    p("v_bfe_u32", t2, lane, 4, 1)
    p("v_lshl_add_u32", t1, t2, 5, t1)
    p("v_and_b32", t2, 1, lane)
    p("v_lshl_add_u32", t1, t2, 4, t1)
    p("v_bfe_u32", t2, lane, 1, 1)
    p("v_lshl_add_u32", t1, t2, 3, t1)
    p("v_bfe_u32", t2, lane, 3, 1)
    p("v_lshlrev_b32", t2, 6, t2)
    p("v_add_u32", vb[0], t1, t2)
    p("v_sub_u32", vb[1], t1, t2)
    p("v_and_b32", t1, 31, lane)
    p("s_lshl_b32", s_t0, s_w, 5)
    p("v_add_u32", t1, s_t0, t1)
    p("v_mul_u32_u24", t1, 1280, t1)
    p("v_lshrrev_b32", t2, 5, lane)
    p("v_lshl_add_u32", xoff, t2, 4, t1)
    p("v_lshlrev_b32", ooff, 4, lane)
    p("v_mov_b32", nm, float(1e30))
    p("v_mov_b32", thr, float(-1e30))
    p("v_mov_b32", l0, 0)
    p("v_mov_b32", l1, 0)
    p("s_mov_b32", s_kof, 0); p("s_mov_b32", s_vof, 0); p("s_mov_b32", s_wof, 0)
    p("s_mov_b32", s_rd, 0)

    def pos_kind(n):
        if n < 20: return "W"
        if n == 20: return "K"
        return "K" if (n - 21) % 2 == 0 else "V"
    def issue_dma(n, m0src):
        k = pos_kind(n)
        d, sr, so, inc = {"W": (dW, sW, s_wof, 32 * 12288), "K": (dK, sK, s_kof, TILE), "V": (dV, sV, s_vof, TILE)}[k]
        p("s_mov_b32", M0, m0src)
        for i in range(3):
            nt = " nt" if (NT and k != "W") else ""
            p("buffer_load_dwordx4", d[i], sr, so, mods=(f"offen offset:{1024*i}{nt} lds" if i else f"offen{nt} lds"), tag=("pos", n))
        p("s_add_u32", so, so, inc)
    def load_x(g):
        for i in range(4):
            p("buffer_load_dwordx4", XF[g % 2].sub(4 * i, 4), xoff, sX, 0, mods=f"offen offset:{32*(4*g+i)}")
    stamp(p, 0, None)
    N0 = 20 if NOQ else 0
    load_x(0)
    for n in range(PF):
        p("s_add_u32", s_t0, s_w3072, n * TILE)
        issue_dma(N0 + n, s_t0)
    p("s_add_u32", s_wr, s_w3072, (NSLOT - 1) * TILE)

    def step_begin(n, kind):
        p.wait_tag(("pos", n))
        p("s_barrier")
        if kind == "K":
            for b in range(4): p("v_add_u32", ka[b], s_rd, kb[b])
        else:
            for b in range(2): p("v_add_u32", va[b], s_rd, vb[b])
    def step_dma(n):
        issue_dma(n + PF, s_wr)
        p("s_add_u32", s_wr, s_rd, s_w3072)
        p("s_add_u32", s_rd, s_rd, TILE)
        p("s_cmp_eq_u32", s_rd, NSLOT * TILE)
        p("s_cselect_b32", s_rd, 0, s_rd)
    def rd_v(f):
        if NOCOMP: return
        s, t = divmod(f, 6)
        for u in range(2):
            p("ds_read_b64_tr_b16", AF[f % 8].sub(2 * u, 2), va[t % 2], mods=f"offset:{(16*s+4*u)*384+64*t}")
    def rd_k(s):
        if NOCOMP: return
        a, b = divmod(s, 4)
        p("ds_read_b128", AF[s % 8], ka[b], mods=f"offset:{128*a}")
    def v_slots(bfr, first):
        sl = []
        for f in range(12):
            def go(f=f):
                s, t = divmod(f, 6)
                c = 0 if (first and s == 0) else ACC.sub(16 * t, 16)
                p(MFMA, ACC.sub(16 * t, 16), AF[f % 8], bfr[s], c)
                if f + 7 < 12: rd_v(f + 7)
            sl.append(go)
        return sl
    def k_slots(Sd):
        sl = []
        for s in range(12):
            def go(s=s):
                p(MFMA, Sd, AF[s % 8], Q.sub(4 * s, 4), 0 if s == 0 else Sd)
                if s + 7 < 12: rd_k(s + 7)
            sl.append(go)
        return sl

    for n in range(N0, 20):
        g = n // 2
        if n % 4 == 0 and n > 0 and n + 4 <= 12: p.begin("q")
        step_begin(n, "W")
        for f in range(7): rd_v(f)
        if n % 2 == 0 and g + 1 < 10: load_x_dyn = True; load_x(g + 1)
        step_dma(n)
        bf = [XF[g % 2].sub(8 * (n % 2), 4), XF[g % 2].sub(8 * (n % 2) + 4, 4)]
        interleave(p, v_slots(bf, n == 0), [])
        if n % 4 == 3 and n > 3 and n + 1 <= 12: p.end("q")
    stamp(p, 1, None)
    for i in range(48):
        p("v_cvt_pk_bf16_f32", Q[i], ACC[2 * i], ACC[2 * i + 1])

    def softmax_parts(Sd):
        A_, B_, C_ = [], [], []
        A_.append(lambda: p("v_max3_f32", mx, Sd[0], Sd[1], Sd[2]))
        for i in range(3, 15, 2):
            A_.append(lambda i=i: p("v_max3_f32", mx, mx, Sd[i], Sd[i + 1]))
        def chk():
            p("v_max_f32", mx, mx, Sd[15])
            p("v_cmp_gt_f32", VCC, mx, thr)
            lr = p.newlabel("rare"); lb = p.newlabel("back")
            p("s_cbranch_vccnz", lr)
            p.label(lb)
            sv = p.cur; blk = []; p.cur = blk
            p.label(lr)
            p("v_mov_b32", t1, mx); p("v_mov_b32", t2, mx)
            p("v_permlane32_swap_b32", t1, t2)
            p("v_max_f32", t1, t1, t2)
            p("v_mul_f32", t1, s_c, t1)
            p("v_max_f32", t1, t1, Neg(nm))
            p("v_sub_f32", t2, Neg(nm), t1)
            p("v_exp_f32", t2, t2)
            p("v_sub_f32", nm, 0, t1)
            p("v_add_f32", t1, float(THR), t1)
            p("v_mul_f32", thr, s_invc, t1)
            p("v_mul_f32", l0, l0, t2); p("v_mul_f32", l1, l1, t2)
            for i in range(96): p("v_mul_f32", ACC[i], ACC[i], t2)
            p("s_branch", lb)
            p.cur = sv
            p.tail.append((lr, blk))
        A_.append(chk)
        def ex(i):
            return [lambda: p("v_fma_f32", Sd[i], Sd[i], s_c, nm), lambda: p("v_exp_f32", Sd[i], Sd[i])]
        def cv(i):
            return [lambda: p("v_cvt_pk_bf16_f32", P[i], Sd[2 * i], Sd[2 * i + 1])]
        for h in range(2):
            L = B_ if h == 0 else C_
            fm = [ex(i)[0] for i in range(8 * h, 8 * h + 8)]
            ee = [ex(i)[1] for i in range(8 * h, 8 * h + 8)]
            L.append(fm[0])
            for i in range(8):
                if i + 1 < 8: L.append(fm[i + 1])
                L.append(ee[i])
                if i % 2 == 1 and i >= 3: L += cv(4 * h + (i - 3) // 2)
            L += cv(4 * h + 3)
        D_ = [(lambda i=i: p("v_add_f32", l0 if i % 2 == 0 else l1, l0 if i % 2 == 0 else l1, Sd[i])) for i in range(16)]
        return A_, B_, C_, D_

    step_begin(20, "K")
    for s in range(7): rd_k(s)
    step_dma(20)
    interleave(p, k_slots(SB[0]), [])
    for j in range(16):
        if j % 2 == 0 and j < 14: p.begin("a")
        A_, B_, C_, D_ = softmax_parts(SB[j % 2])
        n = 21 + 2 * j
        if j < 15:
            step_begin(n, "K")
            for s in range(7): rd_k(s)
            step_dma(n)
            fl = A_ + B_
            interleave(p, k_slots(SB[(j + 1) % 2]), fl)
        else:
            p("s_add_u32", s_wr, s_rd, s_w3072)
            p("s_add_u32", s_rd, s_rd, TILE)
            p("s_cmp_eq_u32", s_rd, NSLOT * TILE)
            p("s_cselect_b32", s_rd, 0, s_rd)
            if not NOCOMP:
                for f in A_ + B_: f()
        step_begin(n + 1, "V")
        for f in range(7): rd_v(f)
        if j < 15: step_dma(n + 1)
        sl = v_slots([P.sub(0, 4), P.sub(4, 4)], False)
        interleave(p, sl[:6], C_)
        interleave(p, sl[6:], D_)
        if j % 2 == 1 and j < 14: p.end("a")
    stamp(p, 2, None)
    p("v_add_f32", l0, l0, l1)
    p("v_mov_b32", t1, l0); p("v_mov_b32", t2, l0)
    p("v_permlane32_swap_b32", t1, t2)
    p("v_add_f32", t1, t1, t2)
    p("v_rcp_f32", t1, t1)
    for i in range(96): p("v_mul_f32", ACC[i], ACC[i], t1)
    for i in range(48): p("v_cvt_pk_bf16_f32", Q[i], ACC[2 * i], ACC[2 * i + 1])
    for s in range(12):
        if s % 4 == 0: p("s_mov_b32", s_t0, 4096 * (s // 4))
        p("buffer_store_dwordx4", Q.sub(4 * s, 4), ooff, sO, s_t0, mods=f"offen offset:{1024*(s%4)}")
    if STAMP: p("s_waitcnt", "vmcnt(0)")
    stamp(p, 3, None)
    p.label(done)
    p("s_endpgm")
    body = p.finalize(lambda key: s_loop)
    return kernel_text("k1_attn_kernel", body, 256, 96, 256)

def gen_k2():
    p = Prog("k2")
    STAGE = 40960
    ACC = V(0, 80)
    AF = [V(80 + 4 * i, 4) for i in range(8)]
    BF = [V(112 + 8 * i, 8) for i in range(3)]
    nb = [136]
    def nv(n=1):
        r = V(nb[0], n); nb[0] += n; return r
    dW = [nv() for _ in range(5)]
    ab = [nv() for _ in range(3)]
    boff = nv(); t1 = nv(); t2 = nv(); t3 = nv(); lane = nv(); tid = nv(); oaddr = nv(); raddr = nv()
    RD = [V(nb[0] + (nb[0] % 2) + 4 * i, 4) for i in range(4)]; nb[0] = RD[-1].i + 4
    print("k2 vgprs", nb[0])
    sW, sB, sOut = S(44, 4), S(48, 4), S(52, 4)
    s_w, s_blk, s_qb, s_nc, s_qi, s_kh = S(64), S(65), S(66), S(67), S(68), S(69)
    s_wof, s_bof, s_w5120 = S(70), S(71), S(72)
    s_t0, s_t1 = S(76), S(77)
    s_loop = S(80)
    done = "L_k2_done"
    p("s_cmp_ge_u32", S(2), 256)
    p("s_cbranch_scc1", done)
    load_ptrs(p)
    p("v_mov_b32", tid, V(0))
    p("v_and_b32", lane, 63, tid)
    p("v_lshrrev_b32", t1, 6, tid)
    p("v_readfirstlane_b32", s_w, t1)
    p("s_and_b32", s_t0, S(2), 7)
    p("s_lshr_b32", s_t1, S(2), 3)
    p("s_lshr_b32", s_blk, s_t0, 2)
    p("s_and_b32", s_t0, s_t0, 3)
    p("s_lshl_b32", s_t0, s_t0, 3)
    p("s_lshr_b32", s_qb, s_t1, 2)
    p("s_add_u32", s_qb, s_qb, s_t0)
    p("s_and_b32", s_nc, s_t1, 3)
    p("s_and_b32", s_qi, s_w, 1)
    p("s_lshr_b32", s_kh, s_w, 1)
    p("s_mul_i32", s_w5120, s_w, 5120)
    p("s_waitcnt", "lgkmcnt(0)")
    p("s_cmp_lg_u32", s_blk, 0)
    sel_ptr(p, sW, 4)
    p("s_mul_i32", s_t0, s_nc, 320)
    p("s_sub_u32", s_t1, 6144 * 1280, s_t0)
    srd(p, sW, sW, s_t0, 0)
    p("s_mov_b32", sW[2], s_t1)
    p("s_lshl_b32", s_t0, s_blk, 6)
    p("s_lshl_b32", s_t1, s_qb, 1)
    p("s_add_u32", s_t0, s_t0, s_t1)
    p("s_add_u32", s_t0, s_t0, s_qi)
    p("s_mul_i32", s_t0, s_t0, 384 * 1024)
    srd(p, sB, S(40, 2), s_t0, 384 * 1024)
    p("s_lshl_b32", s_bof, s_kh, 11)
    p("s_lshl_b32", s_t0, s_qb, 1)
    p("s_add_u32", s_t0, s_t0, s_qi)
    p("s_mul_i32", s_t0, s_t0, 32 * 2560)
    p("s_mul_i32", s_t1, s_blk, 1280)
    p("s_add_u32", s_t0, s_t0, s_t1)
    p("s_mul_i32", s_t1, s_nc, 320)
    p("s_add_u32", s_t0, s_t0, s_t1)
    p("s_sub_u32", s_t1, 2048 * 2560, s_t0)
    srd(p, sOut, S(36, 2), s_t0, 0)
    p("s_mov_b32", sOut[2], s_t1)
    for i in range(5):
        p("v_add_u32", t1, 64 * i, lane)
        p("v_lshrrev_b32", t2, 2, t1)
        p("v_mul_u32_u24", t2, 205, t2)
        p("v_lshrrev_b32", t2, 10, t2)
        p("v_mul_u32_u24", t3, 20, t2)
        p("v_sub_u32", t3, t1, t3)
        p("s_lshl_b32", s_t0, s_w, 4)
        p("v_add_u32", t2, s_t0, t2)
        p("v_mul_u32_u24", t2, 1280, t2)
        p("v_lshl_add_u32", t2, t3, 4, t2)
        p("v_subrev_u32", dW[i], 1024 * (i % 4), t2)
    p("v_lshrrev_b32", t1, 5, lane)
    p("v_lshlrev_b32", t1, 3, t1)
    p("v_bfe_u32", t2, lane, 2, 2)
    p("v_add_u32", t1, t1, t2)
    p("s_lshl_b32", s_t0, s_kh, 5)
    p("v_add_u32", t1, s_t0, t1)
    p("v_mul_u32_u24", t1, 320, t1)
    p("v_bfe_u32", t2, lane, 4, 1)
    p("v_lshl_add_u32", t1, t2, 5, t1)
    p("v_and_b32", t2, 3, lane)
    p("v_lshl_add_u32", ab[0], t2, 3, t1)
    p("v_add_u32", ab[1], STAGE, ab[0])
    p("v_add_u32", ab[2], 2 * STAGE, ab[0])
    p("v_lshlrev_b32", boff, 4, lane)
    p("s_mov_b32", s_wof, 0)

    def issue(n):
        sl = n % 3
        p("s_add_u32", s_t0, s_w5120, sl * STAGE)
        p("s_mov_b32", M0, s_t0)
        for i in range(4):
            p("buffer_load_dwordx4", dW[i], sW, s_wof, mods=f"offen offset:{1024*i} lds" if i else "offen lds", tag=("st", n))
        p("s_add_u32", M0, s_t0, 4096)
        p("buffer_load_dwordx4", dW[4], sW, s_wof, mods="offen lds", tag=("st", n))
        p("s_add_u32", s_wof, s_wof, 128 * 1280)
        p("buffer_load_dwordx4", BF[sl].sub(0, 4), boff, sB, s_bof, mods="offen")
        p("buffer_load_dwordx4", BF[sl].sub(4, 4), boff, sB, s_bof, mods="offen offset:1024")
        p("s_add_u32", s_bof, s_bof, 8192)
    def rd(n, f):
        s, t = divmod(f, 5)
        for u in range(2):
            p("ds_read_b64_tr_b16", AF[f % 8].sub(2 * u, 2), ab[n % 3], mods=f"offset:{(16*s+4*u)*320+64*t}")
    issue(0); issue(1)
    NST = 48
    for n in range(NST):
        if n % 3 == 0 and n > 0: p.begin("g")
        p.wait_tag(("st", n))
        p("s_barrier")
        for f in range(7): rd(n, f)
        issue(n + 2)
        for f in range(10):
            s, t = divmod(f, 5)
            c = 0 if (n == 0 and s == 0) else ACC.sub(16 * t, 16)
            p(MFMA, ACC.sub(16 * t, 16), AF[f % 8], BF[n % 3].sub(4 * s, 4), c)
            if f + 7 < 10: rd(n, f + 7)
        if n % 3 == 2 and n > 2: p.end("g")
    p("s_waitcnt", "vmcnt(0)")
    p("s_barrier")
    p("s_mul_i32", s_t0, s_w, 20480)
    p("v_add_u32", t1, s_t0, boff)
    for u in range(20):
        p("ds_write_b128", t1, ACC.sub(4 * u, 4), mods=f"offset:{1024*u}")
    p.wait_lds()
    p("s_barrier")
    p("s_mul_i32", s_t0, s_qi, 20480)
    p("s_mul_i32", s_t1, s_kh, 5120)
    p("s_add_u32", s_t0, s_t0, s_t1)
    p("v_add_u32", raddr, s_t0, boff)
    p("v_add_u32", t3, 81920, raddr)
    p("v_and_b32", t1, 31, lane)
    p("v_mul_u32_u24", t1, 2560, t1)
    p("v_lshrrev_b32", t2, 5, lane)
    p("v_lshl_add_u32", oaddr, t2, 3, t1)
    for i in range(5):
        R = [V(4 * (4 * i + k), 4) for k in range(4)]
        for k in range(4):
            p("ds_read_b128", R[k], raddr if k < 2 else t3, mods=f"offset:{(k%2)*40960 + 1024*i}")
    for i in range(5):
        R = [V(4 * (4 * i + k), 4) for k in range(4)]
        for e in range(4):
            p("v_add_f32", R[0][e], R[0][e], R[1][e])
            p("v_add_f32", R[2][e], R[2][e], R[3][e])
            p("v_add_f32", R[0][e], R[0][e], R[2][e])
        p("v_cvt_pk_bf16_f32", R[1][0], R[0][0], R[0][1])
        p("v_cvt_pk_bf16_f32", R[1][1], R[0][2], R[0][3])
        p("s_mul_i32", s_t0, s_kh, 80)
        p("buffer_store_dwordx2", R[1].sub(0, 2), oaddr, sOut, s_t0, mods=f"offen offset:{16*i}")
    p.label(done)
    p("s_endpgm")
    body = p.finalize(lambda key: s_loop)
    return kernel_text("k2_oproj_kernel", body, 168, 96, 168)

def main(out):
    hdr = open(f"cdna_kernels/{NAME}.s.ref").read().split("; Override launch")[0]
    c1, d1 = gen_k1()
    c2, d2 = gen_k2()
    txt = hdr
    txt += "; @launch kernel=k1_attn_kernel grid=(1024,1,1) block=(256,1,1) lds=73728\n"
    if not K1ONLY: txt += "; @launch kernel=k2_oproj_kernel grid=(256,1,1) block=(512,1,1) lds=163840\n"
    txt += '.amdgcn_target "amdgcn-amd-amdhsa--gfx950"\n.text\n'
    txt += c1 + c2
    txt += '.section .rodata,"a"\n' + d1 + d2
    open(out, "w").write(txt)

if __name__ == "__main__":
    for fl in ("STAMP", "NOQ", "NOCOMP", "NT", "NOSWZ", "K1ONLY"):
        if "-" + fl.lower() in sys.argv:
            globals()[fl] = True; sys.argv.remove("-" + fl.lower())
    main(sys.argv[1] if len(sys.argv) > 1 else f"cdna_kernels/{NAME}.s")
```

```python
import sys, math, os
sys.path.insert(0, 'gen')
from asmlib import *
import asmlib
from gen_v1 import load_ptrs, sel_ptr, srd, NAME, CSCALE

M16 = "v_mfma_f32_16x16x32_bf16"
THR = 8.0
OPT = dict(stamp=False, k1only=False, norot=False, nont=False, nopf=False, l2kv=False, lowthr=False, nocompact=False,
           psc1=False, osc1=False)
PARK_OFF = 0x5000000

def gen_k1():
    p = Prog("k1")
    NS = 13; PITCH = 12416; D = 7; SEG = 5; WPITCH = 3104
    WG = int(os.environ.get("WG", "3"))
    ACC = V(0, 96); QN = V(96, 96); SB = [V(192, 16), V(208, 16)]; NMV = V(224, 8)
    nb = [232]
    def nv(n=1):
        r = V(nb[0], n); nb[0] += n; return r
    dK = [nv() for _ in range(3)]; dV = [nv() for _ in range(3)]; dW = [nv() for _ in range(3)]
    kb = [[nv() for _ in range(2)] for _ in range(3)]; tb = [nv() for _ in range(3)]
    ooff = nv(); mx = nv(); t1 = nv(); t2 = nv(); r0 = nv(); r1 = nv()
    assert nb[0] <= 256, nb[0]
    XR = A(0, 160); Q = A(160, 48); AF = [A(208 + 4 * i, 4) for i in range(8)]
    LS = [A(240, 4), A(244, 4)]; ONES = A(248, 4); SAVE = A(252, 3)
    lane = V(1); u1 = V(2); u2 = V(3); u3 = V(4); u4 = V(5); u5 = V(6)
    dX = [V(8 + i) for i in range(3)]; xrow = [V(12 + i) for i in range(3)]; xun = [V(16 + i) for i in range(3)]
    xb = [V(20), V(21)]
    sX, sK, sV, sW, sO, sP, sWo = S(44, 4), S(48, 4), S(52, 4), S(56, 4), S(60, 4), S(64, 4), S(92, 2)
    s_w, s_blk, s_hg, s_b, s_rot = S(68), S(69), S(70), S(71), S(72)
    s_mk, s_mt = S(73), S(74)
    s_kof, s_vof = S(75), S(76)
    s_wc, s_wb, s_we, s_wstep = S(77), S(78), S(79), S(80)
    s_pof, s_c, s_it = S(81), S(82), S(83)
    s_t0, s_t1 = S(88), S(89)
    s_ngd, s_ngs = S(90), S(91)
    s_ret = S(94, 2)
    s_thr = S(43)
    WROW = 32 * 12288; OROW = 32 * 1280

    def stamp(tv=None):
        if not OPT["stamp"]: return
        a, b = (t1, t2)
        p("s_memrealtime", S(84, 2))
        p("s_waitcnt", "lgkmcnt(0)")
        p("s_lshl_b32", S(86), S(2), 7)
        p("s_add_u32", S(86), S(86), S(87))
        p("s_add_u32", S(87), S(87), 8)
        p("v_mov_b32", mx, S(86))
        p("v_mov_b32", a, S(84)); p("global_store_dword", mx, a, S(40, 2))
        p("v_mov_b32", b, S(85)); p("global_store_dword", mx, b, S(40, 2), mods="offset:4")
        p("s_memtime", S(84, 2))
        p("s_waitcnt", "lgkmcnt(0)")
        p("v_mov_b32", a, S(84)); p("global_store_dword", mx, a, S(40, 2), mods="offset:64")
        p("v_mov_b32", b, S(85)); p("global_store_dword", mx, b, S(40, 2), mods="offset:68")

    done = "L_k1_done"
    p("s_cmp_ge_u32", S(2), 256)
    p("s_cbranch_scc1", done)
    load_ptrs(p)
    if not OPT["nopf"]:
        p("s_getpc_b64", S(90, 2))
        p.label("L_k1_pc")
        p("v_lshlrev_b32", V(24), 7, V(0))
        for i in range(4):
            p("v_add_u32", V(25 + i), 32768 * i, V(24))
            p("v_min_u32", V(25 + i), "L_k1_codeend-L_k1_pc-4", V(25 + i))
            p("global_load_dword", V(30 + i), V(25 + i), S(90, 2))
    p("v_and_b32", lane, 63, V(0))
    p("v_lshrrev_b32", u1, 6, V(0))
    p("v_readfirstlane_b32", s_w, u1)
    p("s_and_b32", s_t0, S(2), 7)
    p("s_lshr_b32", s_t1, S(2), 3)
    p("s_lshr_b32", s_blk, s_t0, 2)
    p("s_and_b32", s_t0, s_t0, 3)
    p("s_lshl_b32", s_t0, s_t0, 1)
    p("s_and_b32", s_hg, s_t1, 1)
    p("s_add_u32", s_hg, s_hg, s_t0)
    p("s_lshr_b32", s_b, s_t1, 1)
    p("s_mul_i32", s_mk, s_w, 3072)
    p("s_mul_i32", s_mt, s_w, WPITCH)
    p("s_mov_b32", s_c, float(CSCALE))
    p("s_mov_b32", s_thr, float(0.25 if OPT["lowthr"] else THR))
    p("s_mov_b32", s_it, 0)
    if OPT["stamp"]: p("s_mov_b32", S(87), 0x4000000)
    if OPT["norot"]: p("s_mov_b32", s_rot, 0)
    else:
        p("s_sub_u32", s_t1, s_b, 10)
        p("s_cmp_ge_u32", s_b, 10)
        p("s_cselect_b32", s_rot, s_t1, s_b)
    p("s_lshl_b32", s_t0, s_w, 1)
    p("s_and_b32", s_t1, s_w, 1)
    p("s_lshl_b32", S(84), s_t1, 1)
    p("s_lshr_b32", s_t1, s_w, 1)
    p("s_lshl_b32", S(85), s_t1, 3)
    p("s_add_u32", S(84), S(84), S(85))
    p("s_lshl_b32", S(85), s_w, 3)
    for i in range(3):
        p("v_add_u32", u1, 64 * i, lane)
        p("v_lshrrev_b32", u2, 3, u1)
        p("v_mul_u32_u24", u2, 11, u2)
        p("v_lshrrev_b32", u2, 5, u2)
        p("v_mul_u32_u24", u3, 24, u2)
        p("v_sub_u32", u3, u1, u3)
        p("v_bfe_u32", u4, u2, 1, 1)
        p("v_add_u32", u4, s_t0, u4)
        p("v_xor_b32", xun[i], u4, u3)
        p("v_xor_b32", u4, u4, lane)
        p("v_lshlrev_b32", u4, 4, u4)
        p("v_add_u32", dK[i], s_mk, u4)
        p("v_add_u32", u4, S(85), u2)
        p("v_mul_u32_u24", u4, 1280, u4)
        p("v_subrev_u32", xrow[i], 1024 * i, u4)
        p("v_and_b32", u4, 1, u2)
        p("v_add_u32", u4, S(84), u4)
        p("v_bfe_u32", u5, u2, 1, 1)
        p("v_lshl_add_u32", u1, u5, 2, u4)
        p("v_lshl_add_u32", u4, u5, 4, u4)
        p("v_lshrrev_b32", u5, 2, u2)
        p("v_lshl_add_u32", u1, u5, 4, u1)
        p("v_lshl_add_u32", u4, u5, 2, u4)
        p("v_lshlrev_b32", u5, 4, u3)
        p("v_subrev_u32", u5, 1024 * i, u5)
        p("v_mul_u32_u24", u2, 384, u1)
        p("v_add_u32", dV[i], u2, u5)
        p("v_mul_u32_u24", u2, 12288, u1)
        p("v_add_u32", dW[i], u2, u5)
        p("v_lshrrev_b32", u2, 3, u3)
        p("v_add_u32", u2, s_rot, u2)
        p("v_subrev_u32", u1, 10, u2)
        p("v_min_u32", u2, u1, u2)
        p("v_lshlrev_b32", u2, 7, u2)
        p("v_and_b32", u1, 7, u3)
        p("v_lshl_add_u32", u2, u1, 4, u2)
        p("v_mul_u32_u24", u4, 1280, u4)
        p("v_add_u32", u2, u2, u4)
        p("v_subrev_u32", u2, 1024 * i, u2)
        p("v_accvgpr_write_b32", SAVE[i], u2)
    p("s_waitcnt", "lgkmcnt(0)")
    p("s_cmp_lg_u32", s_blk, 0)
    sel_ptr(p, sX, 0); sel_ptr(p, sK, 1); sel_ptr(p, sV, 2); sel_ptr(p, sW, 3); sel_ptr(p, sWo, 4)
    p("s_mul_i32", s_t0, s_b, 163840)
    srd(p, sX, sX, s_t0, 163840)
    p("s_mul_i32", s_t0, s_hg, 4 * 384)
    p("s_sub_u32", s_t1, 640 * 12288, s_t0)
    srd(p, sW, sW, s_t0, 0)
    p("s_mov_b32", sW[2], s_t1)
    p("s_mul_i32", s_wc, s_rot, 2 * WROW)
    p("s_mov_b32", s_wb, 0)
    p("s_mov_b32", s_we, 20 * WROW)
    p("s_mov_b32", s_wstep, WROW)

    def late_setup():
        p("s_lshl_b32", s_t0, s_b, 3)
        p("s_add_u32", s_t0, s_t0, s_hg)
        p("s_mul_i32", s_t0, s_t0, 4 * 196608)
        srd(p, sK, sK, s_t0, 4 * 196608)
        srd(p, sV, sV, s_t0, 4 * 196608)
        p("s_mul_i32", s_t0, s_hg, 768 * 1280)
        p("s_add_u32", sWo[0], sWo[0], s_t0)
        p("s_addc_u32", sWo[1], sWo[1], 0)
        p("s_and_b32", sWo[1], sWo[1], 0xffff)
        p("s_lshl_b32", s_t0, s_blk, 4)
        p("s_add_u32", s_t0, s_t0, s_b)
        p("s_lshl_b32", s_t0, s_t0, 2)
        p("s_add_u32", s_t0, s_t0, s_w)
        p("s_mul_i32", s_t1, s_t0, 80)
        p("s_add_u32", s_t1, s_t1, s_hg)
        p("s_lshl_b32", s_t1, s_t1, 12)
        srd(p, sO, S(40, 2), s_t1, 9 * 32768 + 4096)
        p("s_lshl_b32", s_t0, s_t0, 3)
        p("s_add_u32", s_t0, s_t0, s_hg)
        p("s_mul_i32", s_t0, s_t0, 24576)
        p("s_add_u32", s_t0, s_t0, PARK_OFF)
        srd(p, sP, S(40, 2), s_t0, 24576)
        p("s_mov_b32", s_kof, 0); p("s_mov_b32", s_vof, 0)
        p("s_mov_b32", s_pof, 0x40000000)
        p("v_lshlrev_b32", ooff, 4, lane)
        p("v_and_b32", u1, 3, lane)
        p("v_bfe_u32", u2, lane, 2, 2)
        p("v_lshl_add_u32", u1, u2, 3, u1)
        p("v_mul_u32_u24", u1, 384, u1)
        p("v_bfe_u32", u2, lane, 1, 3)
        p("v_lshrrev_b32", u3, 4, lane)
        for par in range(2):
            p("v_add_u32", u4, 4 * par, u3)
            p("v_xor_b32", u4, u4, u2)
            p("v_lshl_add_u32", kb[0][par], u4, 4, u1)
            for sg in (1, 2): p("v_add_u32", kb[sg][par], sg * SEG * PITCH, kb[0][par])
        p("v_bfe_u32", u1, lane, 3, 2)
        p("v_mul_u32_u24", u1, WPITCH, u1)
        p("v_bfe_u32", u2, lane, 2, 1)
        p("v_lshrrev_b32", u3, 5, lane)
        p("v_lshl_add_u32", u2, u3, 2, u2)
        p("v_mul_u32_u24", u2, 384, u2)
        p("v_add_u32", u1, u1, u2)
        p("v_and_b32", u2, 1, lane)
        p("v_lshl_add_u32", u1, u2, 4, u1)
        p("v_bfe_u32", u2, lane, 1, 1)
        p("v_lshl_add_u32", tb[0], u2, 3, u1)
        for sg in (1, 2): p("v_add_u32", tb[sg], sg * SEG * PITCH, tb[0])
        p("v_mov_b32", u1, 0x3f803f80)
        for i in range(4): p("v_accvgpr_write_b32", ONES[i], u1)

    tiles = []; groups = []
    def T_(kind, h=0, i=0, **kw):
        d = dict(kind=kind, h=h, i=i); d.update(kw); tiles.append(d); return len(tiles) - 1
    def G_(*ts, name=None): groups.append(dict(t=list(ts), name=name))
    Wt = lambda h, i: T_("W", h, i)
    Xt = lambda j: [T_("X", j, w) for w in range(4)]
    G_(*Xt(0)); G_(Wt(0, 0), Wt(0, 1)); G_(*Xt(1), Wt(0, 2), Wt(0, 3)); G_(Wt(0, 4), Wt(0, 5), Wt(0, 6))
    G_(*Xt(2), Wt(0, 7), Wt(0, 8)); G_(Wt(0, 9), Wt(0, 10), Wt(0, 11)); G_(*Xt(3), Wt(0, 12), Wt(0, 13))
    G_(Wt(0, 14), Wt(0, 15), Wt(0, 16)); G_(Wt(0, 17), Wt(0, 18))
    G_(Wt(0, 19), T_("K", 0, 0), Wt(1, 0), name=(-1, 15))
    two = (0, 3, 6, 9, 12)
    def acc_block(R): return [R.sub(4 * i, 4) for i in range(8)]
    SS = V(192, 32)
    holes = [ACC.sub(8 * i + 4, 4) for i in range(12)]
    accs = {0: acc_block(QN.sub(0, 32)), 1: acc_block(QN.sub(32, 32)), 2: acc_block(QN.sub(64, 32)),
            3: acc_block(Q.sub(0, 32)), 4: acc_block(SS), 5: holes[:8],
            6: acc_block(QN.sub(0, 32)), 7: acc_block(QN.sub(32, 32)), 8: acc_block(QN.sub(64, 32)), 9: acc_block(SS)}
    Ob = lambda ng, k3: T_("Ob", ng, k3)
    Oa = lambda ks: T_("Oa", 0, ks)
    for h in range(4):
        wi = 1
        for j in range(16):
            st = []
            if j < 15: st.append(T_("K", h, j + 1))
            elif h < 3: st.append(T_("K", h + 1, 0))
            if j < 14:
                for _ in range(2 if j in two else 1):
                    st.append(Wt(h + 1, wi)); wi += 1
            elif j == 15 and h < 3: st.append(Wt(h + 2, 0))
            elif h == 3:
                if j == 14: st.append(Ob(3, 0))
                else: st += [Ob(3, 1), Ob(3, 2)]
            st.append(T_("V", h, j))
            G_(*st, name=(h, j))
        assert wi == 20
    tl = [(3, 3), (3, 4), (3, 5)] + [(4, k) for k in range(6)] + [("a", ks) for ks in range(18, 24)] + \
         [(3, 6), (3, 7), (4, 6), (4, 7)] + [(ng, k) for ng in range(5, 10) for k in range(8)]
    ids = [Oa(b) if a == "a" else Ob(a, b) for a, b in tl]
    for i in range(0, len(ids), 3): G_(*ids[i:i + 3], name=("t", i // 3))
    NT = len(tiles)
    find = lambda kind, h, i: next(n for n, T in enumerate(tiles) if T["kind"] == kind and T["h"] == h and T["i"] == i)

    def ofrag(ks, qh):
        if ks < 18: return XR.sub(8 * ks + 4 * qh, 4)
        return ACC.sub(16 * (ks - 18) + 8 * qh, 4)

    mf = []
    frags = []
    def add_mf(*a): mf.append(lambda: p(M16, *a))
    for n, T in enumerate(tiles):
        k = T["kind"]; T["m0"] = len(mf); T["f0"] = len(frags)
        if k == "X":
            T["m1"] = len(mf); continue
        if k == "V":
            Pb = SB[T["i"] % 2]
            for qh in range(2): add_mf(LS[qh], ONES, Pb.sub(8 * qh, 4), 0 if T["i"] == 0 else LS[qh])
        for f in range(12):
            fi = len(frags); frags.append((n, f, len(mf))); a = AF[fi % 8]
            for qh in range(2):
                if k == "K":
                    s, kt = divmod(f, 2)
                    d = SB[T["i"] % 2].sub(8 * qh + 4 * kt, 4)
                    c = d if s else (0 if T["i"] == 0 else NMV.sub(4 * qh, 4))
                    add_mf(d, a, Q.sub(8 * s + 4 * qh, 4), c)
                elif k == "V":
                    d = ACC.sub(16 * (f // 2) + 8 * qh + 4 * (f % 2), 4)
                    add_mf(d, a, Pb.sub(8 * qh, 4), 0 if T["i"] == 0 else d)
                elif k == "W":
                    d = QN.sub(16 * (f // 2) + 8 * qh + 4 * (f % 2), 4)
                    add_mf(d, a, XR.sub(8 * T["i"] + 4 * qh, 4), 0 if T["i"] == 0 else d)
                elif k == "Oa":
                    d = QN.sub(16 * (f // 2) + 8 * qh + 4 * (f % 2), 4)
                    add_mf(d, a, ofrag(T["i"], qh), d)
                else:
                    sub, nt = divmod(f, 4); ks = 3 * T["i"] + sub
                    d = accs[T["h"]][(nt // 2 * 2 + qh) * 2 + nt % 2]
                    add_mf(d, a, ofrag(ks, qh), 0 if ks == 0 else d)
        T["m1"] = len(mf)
    NM = len(mf); NF = len(frags)
    pre = [[] for _ in range(NM + 1)]; post = [[] for _ in range(NM + 1)]; last = [[] for _ in range(NM + 1)]
    load = [0.0] * (NM + 1)
    head_ops = []

    def put(k, fn, cost=1.0, where=None):
        if k < 0: head_ops.append(fn); return
        (where if where is not None else post)[k].append(fn); load[k] += cost

    def place(ops, lo=None, hi=None):
        ops = [(o[0], o[1], max(lo, o[2]) if len(o) > 2 and o[2] is not None else lo,
                min(hi, o[3]) if len(o) > 3 and o[3] is not None else hi) for o in ops]
        if not ops: return
        lam = 0.25
        while True:
            pos = []; i = 0; credit = 0.0; miss = False
            for k in range(lo, hi):
                credit = min(credit, 0.5) + max(0.0, lam - load[k]) if (i < len(ops) and ops[i][2] > k) else credit + max(0.0, lam - load[k])
                while i < len(ops) and ops[i][2] <= k and credit >= ops[i][1] * 0.5:
                    if k >= ops[i][3]: miss = True
                    pos.append(k); credit -= ops[i][1]; i += 1
            if i == len(ops) and not miss: break
            lam += 0.25
            assert lam < 400, "cannot place"
        for o, k in zip(ops, pos): put(k, o[0], o[1])
        return pos

    def slot_addr(n):
        sg, so = divmod(n % NS, SEG); return sg, so * PITCH
    def rd_ops(fi):
        n, f, _ = frags[fi]; T = tiles[n]; sg, base = slot_addr(n); a = AF[fi % 8]
        if T["kind"] == "K":
            s, kt = divmod(f, 2)
            return [lambda: p("ds_read_b128", a, kb[sg][s % 2], mods=f"offset:{base + 1536*kt + 128*(s//2)}")]
        return [(lambda u=u: p("ds_read_b64_tr_b16", a.sub(2 * u, 2), tb[sg], mods=f"offset:{base + 768*u + 32*f}")) for u in range(2)]
    first_reads = []
    for fi in range(NF):
        ops = rd_ops(fi)
        if fi < D: first_reads += ops; continue
        m = frags[fi - D][2]
        for u, o in enumerate(ops): put(m + u, o)
    for fi in range(NF):
        if fi % WG == 0:
            regs = [AF[x % 8] for x in range(fi, min(fi + WG, NF))]
            put(frags[fi][2], (lambda regs=regs: p.wait_regs(*regs)), 0.0, pre)
            if frags[fi][2] > 0: load[frags[fi][2] - 1] += 1.0

    def hook(cond_it, body):
        lr = p.ulabel("hk"); lb = p.ulabel("hb")
        p("s_cmp_eq_u32", s_it, cond_it)
        p("s_cbranch_scc1", lr)
        p.label(lb)
        sv = p.cur; blk = []; p.cur = blk
        p.label(lr); body(); p("s_branch", lb)
        p.cur = sv; p.tail.append((lr, blk))

    def dma_ops(n):
        T = tiles[n]; k = T["kind"]; slot = n % NS
        nt = " nt" if (k in "KV" and not OPT["nont"]) else ""
        d, sr, so, mb = {"X": (dX, sX, s_t1, s_mk), "K": (dK, sK, s_kof, s_mk), "V": (dV, sV, s_vof, s_mt),
                         "W": (dW, sW, s_wc, s_mt), "Oa": (dW, sW, s_t1, s_mt), "Ob": (dK, sW, s_t1, s_mt)}[k]
        def first():
            if k == "X":
                if T["i"] == 0:
                    j = T["h"]
                    p("s_lshl_b32", s_t0, s_rot, 7)
                    p("s_add_u32", s_t0, s_t0, 384 * j)
                    for i in range(3):
                        p("v_lshl_add_u32", u1, xun[i], 4, s_t0)
                        p("v_subrev_u32", u2, 1280, u1)
                        p("v_min_u32", u1, u1, u2)
                        p("v_add_u32", dX[i], u1, xrow[i])
                        if j == 3:
                            p("v_cmp_lt_u32", VCC, 7, xun[i])
                            p("v_mov_b32", u2, 0x40000000)
                            p("v_cndmask_b32", dX[i], dX[i], u2, VCC)
                p("s_mov_b32", s_t1, T["i"] * 32 * 1280)
            elif k == "W" and T["i"] == 0 and T["h"] > 0:
                p("s_add_u32", s_wc, s_wc, 384); p("s_add_u32", s_wb, s_wb, 384); p("s_add_u32", s_we, s_we, 384)
                if T["h"] > 1:
                    def sw():
                        p("s_mov_b32", sW[0], sWo[0]); p("s_mov_b32", sW[1], sWo[1]); p("s_mov_b32", sW[2], 576 * 1280)
                        p("s_mov_b32", s_wc, 0); p("s_mov_b32", s_we, -1); p("s_mov_b32", s_wstep, OROW)
                        for i in range(3): p("v_accvgpr_read_b32", dW[i], SAVE[i])
                    hook(2, sw)
            elif k == "Oa":
                p("s_mov_b32", s_t1, T["i"] * OROW)
            elif k == "Ob":
                if T.get("init"):
                    p("s_mov_b32", sW[2], 768 * 1280)
                    p("v_lshrrev_b32", t1, 4, ooff)
                    for i in range(3):
                        p("v_add_u32", t2, 64 * i, t1)
                        p("v_lshrrev_b32", t2, 3, t2)
                        p("v_mul_u32_u24", r0, 11, t2)
                        p("v_lshrrev_b32", r0, 5, r0)
                        p("v_mul_u32_u24", r0, 3, r0)
                        p("v_sub_u32", t2, t2, r0)
                        p("v_mul_u32_u24", r0, OROW, t2)
                        p("v_add_u32", dK[i], dW[i], r0)
                        p("v_add_u32", t2, s_rot, t2)
                        p("v_subrev_u32", r0, 10, t2)
                        p("v_min_u32", t2, r0, t2)
                        p("v_lshlrev_b32", t2, 7, t2)
                        p("v_sub_u32", dK[i], dK[i], t2)
                if T.get("newng"):
                    p("s_add_u32", s_ngd, s_rot, T["h"])
                    p("s_sub_u32", s_t1, s_ngd, 10)
                    p("s_min_u32", s_ngd, s_ngd, s_t1)
                    p("s_lshl_b32", s_ngd, s_ngd, 7)
                p("s_add_u32", s_t1, s_ngd, 3 * T["i"] * OROW)
            p("s_add_u32", M0, mb, slot * PITCH)
            p("buffer_load_dwordx4", d[0], sr, so, mods=f"offen{nt} lds", tag=("pos", n))
        def lastop():
            p("buffer_load_dwordx4", d[2], sr, so, mods=f"offen offset:2048{nt} lds", tag=("pos", n))
            if k == "W":
                p("s_add_u32", s_wc, s_wc, s_wstep)
                p("s_cmp_eq_u32", s_wc, s_we)
                p("s_cselect_b32", s_wc, s_wb, s_wc)
            elif k in "KV":
                p("s_add_u32", so, so, 12288)
                if OPT["l2kv"]:
                    p("s_cmp_eq_u32", so, 2 * 12288); p("s_cselect_b32", so, 0, so)
        return [(first, 4.0), (lambda: p("buffer_load_dwordx4", d[1], sr, so, mods=f"offen offset:1024{nt} lds", tag=("pos", n)), 3.0),
                (lastop, 4.0)]
    prev = None; firstb = True
    for T in tiles:
        if T["kind"] == "Ob":
            if firstb: T["init"] = True; firstb = False
            if T["h"] != prev: T["newng"] = True
            prev = T["h"]

    def x_reads(g):
        xs = [n for n in groups[g]["t"] if tiles[n]["kind"] == "X"]
        if not xs: return []
        j = tiles[xs[0]]["h"]; s0 = xs[0] % NS
        def addr():
            p("s_add_u32", s_t0, s_w, s0)
            p("s_sub_u32", S(84), s_t0, NS)
            p("s_min_u32", s_t0, s_t0, S(84))
            p("s_mul_i32", s_t0, s_t0, PITCH)
            for par in range(2): p("v_add_u32", xb[par], s_t0, kb[0][par])
        ops = [(addr, 6.0)]
        for s in range(6 if j < 3 else 2):
            for qh in range(2):
                ops.append((lambda s=s, qh=qh: p("ds_read_b128", XR.sub(8 * (6 * j + s) + 4 * qh, 4), xb[s % 2],
                                                 mods=f"offset:{1536*qh + 128*(s//2)}"), 1.0))
        return ops

    def gfirst_frag(g):
        return min(tiles[n]["f0"] for n in groups[g]["t"])
    bar = {}
    for g in range(2, len(groups)):
        fi = gfirst_frag(g) - D - 1
        bar[g] = frags[fi][2] + 1
    issued = NS
    for g in range(2, len(groups)):
        k = bar[g]
        def sync(g=g):
            p.wait_tag(*[("pos", n) for n in groups[g]["t"]])
            p("s_barrier")
        put(k, sync, 2.0, last)
        fi = gfirst_frag(g) - D - 1
        nfree = 0
        for n, T in enumerate(tiles):
            if T["kind"] == "X": ok = any(n in groups[gg]["t"] for gg in range(g))
            else: ok = T["f0"] + 11 <= fi
            if not ok: break
            nfree = n + 1
        ops = []
        while issued < nfree + NS and issued < NT:
            ops += dma_ops(issued); issued += 1
        for n in (groups[g + 1]["t"] if g + 1 < len(groups) else []): assert n < issued
        hi = bar[g + 1] if g + 1 in bar else NM
        xr = x_reads(g)
        if xr: place(xr, k + 1, k + 1 + 14)
        place(ops, k + 1, hi)

    def V1(op, *a, c=1.0, lo=None, hi=None): return (lambda: p(op, *a), c, lo, hi)
    def xmax(ta, tb_):
        return [V1("v_permlane32_swap_b32", ta, tb_), V1("v_max_f32", ta, ta, tb_), V1("v_mov_b32", tb_, ta),
                V1("v_permlane16_swap_b32", ta, tb_), V1("v_max_f32", ta, ta, tb_), V1("v_mov_b32", tb_, ta),
                V1("v_permlane32_swap_b32", ta, tb_)]
    def max8(d, Sd, o):
        return [V1("v_max3_f32", d, Sd[o], Sd[o + 1], Sd[o + 2]), V1("v_max3_f32", d, d, Sd[o + 3], Sd[o + 4]),
                V1("v_max3_f32", d, d, Sd[o + 5], Sd[o + 6]), V1("v_max_f32", d, d, Sd[o + 7])]
    def zipm(a, b): return [x for pr in zip(a, b) for x in pr]

    def step_of(h, j): return next(G for G in groups if G["name"] == (h, j))
    def gstart(G): return tiles[G["t"][0]]["m0"]
    def gend(G): return tiles[G["t"][-1]]["m1"]

    def park_pos(h, i): return tiles[find("K", h, 1)]["m1"] + 8 + 3 * i
    for h in range(4):
        for i in range(12):
            def st(i=i):
                p("buffer_store_dwordx4", ACC.sub(8 * i, 4), ooff, sP, s_pof,
                  mods=f"offen offset:{1024*(i%4)}" + (" sc1" if OPT["psc1"] else ""))
                if i % 4 == 3: p("s_add_u32", s_pof, s_pof, 4096)
            put(park_pos(h, i), st, 3.0)
    put(park_pos(0, 11), lambda: p("s_mov_b32", s_pof, 0), 1.0)

    def o_epilogue(h):
        Vt = tiles[find("V", h, 15)]
        ops = [V1("v_accvgpr_read_b32", r0, LS[0][0], lo=Vt["m0"] + 6), V1("v_accvgpr_read_b32", r1, LS[1][0]),
               V1("v_rcp_f32", r0, r0, c=2.0), V1("v_rcp_f32", r1, r1, c=2.0)]
        for i in range(12):
            s, qh = divmod(i, 2)
            lo = Vt["m0"] + 2 + 2 * (2 * s + 1) + 1 + 5
            if h < 3: hi = park_pos(h + 1, i) - 1
            else: hi = tiles[find("Oa", 0, 18)]["m0"] - 2
            R = ACC.sub(8 * i, 8)
            for e in range(8): ops.append(V1("v_mul_f32", R[e], R[e], (r0, r1)[qh], lo=lo, hi=hi))
            for m in range(4): ops.append(V1("v_cvt_pk_bf16_f32", R[m], R[2 * m], R[2 * m + 1], lo=lo, hi=hi))
        hi = park_pos(h + 1, 11) if h < 3 else tiles[find("Oa", 0, 18)]["m0"] - 2
        place(ops, Vt["m0"] + 6, hi)

    def q_conv(h):
        Wl = tiles[find("W", h, 19)]; Kn = tiles[find("K", h, 0)]
        Kp = tiles[find("K", h - 1, 15)] if h else None
        ops = []; pend = []; swi = []
        for i in range(13):
            if i < 12:
                s, qh = divmod(i, 2)
                lo = Wl["m0"] + 2 * (2 * s + 1) + 1 + 5
                hi = Kn["m0"] + 4 * s - 6
                R = QN.sub(8 * i, 8)
                for e in range(4): ops.append(V1("v_mul_f32", R[e], s_c, R[e], lo=lo, hi=hi))
            if pend: ops += pend; swi.append(len(ops) - 1)
            if i == 12: break
            for e in range(4, 8): ops.append(V1("v_mul_f32", R[e], s_c, R[e], lo=lo, hi=hi))
            for m in range(4): ops.append(V1("v_cvt_pk_bf16_f32", R[m], R[2 * m], R[2 * m + 1], lo=lo, hi=hi))
            pend = [V1("v_permlane32_swap_b32", R[0], R[2], lo=lo, hi=hi), V1("v_permlane32_swap_b32", R[1], R[3], lo=lo, hi=hi)]
        if h == 0:
            for o in ops: put(Kn["m0"], o[0], 0.0, pre)
            for i in range(48): put(Kn["m0"], V1("v_accvgpr_write_b32", Q[i], QN[8 * (i // 4) + i % 4])[0], 0.0, pre)
            return
        pos = place(ops, Wl["m0"], Kn["m0"] + 24)
        wr = []
        for i in range(12):
            s = i // 2
            lw = max(pos[swi[i]] + 1, Kp["m0"] + 2 * (2 * s + 1) + 2)
            wr += [V1("v_accvgpr_write_b32", Q[4 * i + m], QN[8 * i + m], lo=lw, hi=Kn["m0"] + 4 * s - 2) for m in range(4)]
        place(wr, Wl["m0"], Kn["m0"] + 24)

    def first_tile(h):
        Kt = tiles[find("K", h, 0)]; Kn = tiles[find("K", h, 1)]; Sd = SB[0]
        ops = zipm(max8(t1, Sd, 0), max8(t2, Sd, 8)) + xmax(t1, t2)
        for i in range(8): ops.append(V1("v_sub_f32", NMV[i], 0, (t1, t2)[i // 4]))
        for i in range(16): ops.append(V1("v_sub_f32", Sd[i], Sd[i], (t1, t2)[i // 8]))
        place(ops, Kt["m1"] + 4, Kn["m0"] - 2)

    def check(h, j):
        Sd = SB[j % 2]; Vt = tiles[find("V", h, j - 1)]
        ops = [V1("v_max3_f32", mx, Sd[0], Sd[1], Sd[2])]
        for i in range(3, 15, 2): ops.append(V1("v_max3_f32", mx, mx, Sd[i], Sd[i + 1]))
        ops.append(V1("v_max_f32", mx, mx, Sd[15]))
        ops.append(V1("v_cmp_lt_f32", VCC, s_thr, mx))
        place(ops, Vt["m0"] + 4, Vt["m1"] - 1)
        def br():
            lr = p.ulabel("rr"); lb = p.ulabel("rb")
            p("s_cbranch_vccnz", lr)
            p.label(lb)
            sv = p.cur; blk = []; p.cur = blk
            p.label(lr)
            p("s_call_b64", s_ret, f"L_k1_rare{j%2}")
            p("s_branch", lb)
            p.cur = sv; p.tail.append((lr, blk))
        pre[Vt["m1"]].insert(0, br); load[Vt["m1"] - 1] += 1.0

    def expcvt(h, j):
        Sd = SB[j % 2]; G = step_of(h, j); Vt = tiles[find("V", h, j)]
        E = [V1("v_exp_f32", Sd[i], Sd[i], c=2.0) for i in range(16)]
        C = [V1("v_cvt_pk_bf16_f32", Sd[8 * (m // 4) + m % 4], Sd[2 * m], Sd[2 * m + 1]) for m in range(8)]
        ops = []
        for i in range(16):
            ops.append(E[i])
            if i >= 2 and i % 2 == 0: ops.append(C[i // 2 - 1])
        ops.append(C[7])
        place(ops, gstart(G), Vt["m0"] - 2)

    def out_store(ng):
        tl_ = [T for T in tiles if (T["kind"] == "Ob" and T["h"] == ng) or (T["kind"] == "Oa" and ng < 3)]
        Tl = tl_[-1]; ac = accs[ng]
        nxt = [m for m in range(ng + 1, 10) if accs[m][0].regs() == ac[0].regs()]
        hi = tiles[find("Ob", nxt[0], 0)]["m0"] - 1 if nxt else NM
        lo = min(Tl["m1"] + 4, NM - 1)
        hi = min(hi, lo + 60, NM)
        def setof():
            p("s_add_u32", s_ngs, s_rot, ng)
            p("s_sub_u32", s_t0, s_ngs, 10)
            p("s_min_u32", s_ngs, s_ngs, s_t0)
            p("s_lshl_b32", s_ngs, s_ngs, 15)
        ops = [(setof, 4.0)]
        for st in range(4):
            A_, B_ = ac[2 * st], ac[2 * st + 1]
            if A_.k == "a":
                for e in range(4):
                    ops.append(V1("v_accvgpr_read_b32", NMV[e], A_[e])); ops.append(V1("v_accvgpr_read_b32", NMV[4 + e], B_[e]))
                A_, B_ = NMV.sub(0, 4), NMV.sub(4, 4)
            ops += [V1("v_cvt_pk_bf16_f32", A_[0], A_[0], A_[1]), V1("v_cvt_pk_bf16_f32", A_[1], A_[2], A_[3]),
                    V1("v_cvt_pk_bf16_f32", A_[2], B_[0], B_[1]), V1("v_cvt_pk_bf16_f32", A_[3], B_[2], B_[3])]
            ops.append((lambda A_=A_, st=st: p("buffer_store_dwordx4", A_, ooff, sO, s_ngs,
                                               mods=f"offen offset:{1024*st}" + (" sc1" if OPT["osc1"] else "")), 3.0))
        return ops, lo, hi

    for h in range(4):
        first_tile(h)
        for j in range(1, 16): check(h, j)
        for j in range(16): expcvt(h, j)
    for h in range(4):
        q_conv(h)
        o_epilogue(h)
    allops = []
    for ng in range(10):
        ops, lo, hi = out_store(ng)
        if ng in (1, 2, 3, 4): hi = min(hi, tiles[find("Ob", 6, 0)]["m0"] - 1) if ng < 3 else hi
        allops.append((ops, lo, hi))
    first5 = [(o[0], o[1], lo, None) for ops, lo, hi in allops[:5] for o in ops]
    place(first5, allops[0][1], tiles[find("Ob", 6, 0)]["m0"] - 1)
    for ops, lo, hi in allops[5:9]: place(ops, lo, hi)
    end_ops = allops[9][0]

    def unpark():
        def body():
            for i in range(24):
                if i % 4 == 0: p("s_mov_b32", s_t0, 4096 * (i // 4))
                p("buffer_load_dwordx4", XR.sub(4 * i, 4), ooff, sP, s_t0, mods=f"offen offset:{1024*(i%4)}")
        hook(2, body)
    def move_o2():
        def body():
            for i in range(12):
                for m in range(4): p("v_accvgpr_write_b32", XR[96 + 4 * i + m], ACC[8 * i + m])
        hook(2, body)
    EB = int(os.environ.get("EB", "9"))
    marks = {}
    for h in range(4):
        put(tiles[find("W", h + 1, 11)]["m1"] + 1, unpark, 2.0)
        v0 = tiles[find("V", h, 0)]["m0"]
        lst = []
        if h > 0:
            lst += [move_o2, stamp, lambda: p.end("B2")]
        else: lst += [stamp]
        lst.append(lambda: p.begin("B1"))
        marks[v0] = lst
        e = gend(step_of(h, EB))
        marks[e] = [lambda: p.end("B1")] + ([lambda: p.begin("B2")] if h < 3 else [])
    marks[tiles[find("V", 3, 15)]["m1"]] = [stamp]

    stamp()
    for n in range(NS):
        for o in dma_ops(n): o[0]()
        if n == 5: late_setup()
    p.wait_tag(*[("pos", n) for n in groups[0]["t"]])
    p("s_barrier")
    for o in x_reads(0): o[0]()
    p.wait_tag(*[("pos", n) for n in groups[1]["t"]])
    p("s_barrier")
    for o in first_reads: o()
    for k in range(NM):
        for o in marks.get(k, []): o()
        for o in pre[k]: o()
        mf[k]()
        for o in post[k]: o()
        for o in last[k]: o()
    for o in end_ops: o[0]()
    if OPT["stamp"]:
        stamp(); p("s_waitcnt", "vmcnt(0)"); stamp()
    p.label(done)
    p("s_endpgm")
    for bi in range(2):
        Sd = SB[bi]; blk = []; p.cur = blk
        lab = f"L_k1_rare{bi}"
        p.label(lab)
        p("s_nop", 15)
        for o in zipm(max8(t1, Sd, 0), max8(t2, Sd, 8)) + xmax(t1, t2): o[0]()
        p("v_max_f32", t1, 0, t1); p("v_max_f32", t2, 0, t2)
        for i in range(16): p("v_sub_f32", Sd[i], Sd[i], (t1, t2)[i // 8])
        for i in range(8): p("v_sub_f32", NMV[i], NMV[i], (t1, t2)[i // 4])
        p("v_exp_f32", t1, Neg(t1)); p("v_exp_f32", t2, Neg(t2))
        for i in range(96): p("v_mul_f32", ACC[i], ACC[i], (t1, t2)[(i // 8) % 2])
        for qh in range(2):
            for i in range(4):
                p("v_accvgpr_read_b32", mx, LS[qh][i]); p("v_mul_f32", mx, mx, (t1, t2)[qh]); p("v_accvgpr_write_b32", LS[qh][i], mx)
        p("s_nop", 3)
        p("s_setpc_b64", s_ret)
        p.tail.append((lab, blk))
    p.cur = p.items
    ld = load[tiles[find("V", 1, 0)]["m0"]:tiles[find("V", 2, 0)]["m0"]]
    print("  head: mfma", len(ld), "filler slots", sum(ld), "max gap", max(ld), "over2", sum(max(0, x - 2) for x in ld))
    body = p.finalize(None, fold2=s_it, compact=not OPT["nocompact"])
    body += "\nL_k1_codeend:\n"
    nn = sum(1 for it in p.final_items if isinstance(it, Ins) and it.kind == "s_nop")
    print("  k1 instrs", sum(1 for it in p.final_items if isinstance(it, Ins)), "nops", nn)
    return kernel_text("k1_attn_kernel", body, 512, 96, 256)

def gen_k3():
    p = Prog("k3")
    NWG = 640
    sI, sOut = S(44, 4), S(48, 4)
    lane = V(1); t1 = V(2); t2 = V(3); vin = V(4); vout = V(5)
    L = [[V(8 + 4 * (8 * hf + g), 4) for g in range(8)] for hf in range(2)]
    F = V(72, 8); Tm = V(80, 8)
    s_w, s_u, s_q, s_ng, s_r, s_t0, s_t1 = S(64), S(65), S(66), S(67), S(68), S(69), S(70)
    done = "L_k3_done"
    p("s_cmp_ge_u32", S(2), NWG)
    p("s_cbranch_scc1", done)
    p("s_load_dwordx2", S(36, 2), S(0, 2), 80)
    p("s_load_dwordx2", S(40, 2), S(0, 2), 96)
    p("v_and_b32", lane, 63, V(0))
    p("v_lshrrev_b32", t1, 6, V(0))
    p("v_readfirstlane_b32", s_w, t1)
    p("s_lshl_b32", s_u, S(2), 2)
    p("s_add_u32", s_u, s_u, s_w)
    p("s_and_b32", s_q, s_u, 1)
    p("s_lshr_b32", s_u, s_u, 1)
    p("s_mul_i32", s_r, s_u, 6554)
    p("s_lshr_b32", s_r, s_r, 16)
    p("s_mul_i32", s_t0, s_r, 10)
    p("s_sub_u32", s_ng, s_u, s_t0)
    p("v_lshlrev_b32", vin, 4, lane)
    p("v_and_b32", t1, 3, lane)
    p("v_bfe_u32", t2, lane, 2, 2)
    p("v_lshl_add_u32", t1, t2, 3, t1)
    p("v_mul_u32_u24", t1, 2560, t1)
    p("v_lshrrev_b32", t2, 4, lane)
    p("v_lshl_add_u32", vout, t2, 4, t1)
    p("s_waitcnt", "lgkmcnt(0)")
    p("s_lshl_b32", s_t0, s_u, 15)
    p("s_lshl_b32", s_t1, s_q, 10)
    p("s_add_u32", s_t0, s_t0, s_t1)
    srd(p, sI, S(40, 2), s_t0, 32768 - 1024)
    for g in range(8):
        p("s_mov_b32", s_t1, 4096 * g)
        for hf in range(2):
            p("buffer_load_dwordx4", L[hf][g], vin, sI, s_t1, mods=f"offen offset:{2048*hf}")
    p("s_and_b32", s_t0, s_r, 63)
    p("s_lshl_b32", s_t0, s_t0, 5)
    p("s_lshl_b32", s_t1, s_q, 2)
    p("s_add_u32", s_t0, s_t0, s_t1)
    p("s_mul_i32", s_t0, s_t0, 2560)
    p("s_lshr_b32", s_t1, s_r, 6)
    p("s_mul_i32", s_t1, s_t1, 1280)
    p("s_add_u32", s_t0, s_t0, s_t1)
    p("s_lshl_b32", s_t1, s_ng, 7)
    p("s_add_u32", s_t0, s_t0, s_t1)
    p("s_sub_u32", s_t1, 2048 * 2560, s_t0)
    srd(p, sOut, S(36, 2), s_t0, 0)
    p("s_mov_b32", sOut[2], s_t1)
    p("s_mov_b32", s_t1, 0xffff0000)
    for hf in range(2):
        for g in range(8):
            R = L[hf][g]
            for m in range(4):
                if g == 0:
                    p("v_lshlrev_b32", F[2 * m], 16, R[m]); p("v_and_b32", F[2 * m + 1], s_t1, R[m])
                else:
                    p("v_lshlrev_b32", Tm[2 * m], 16, R[m]); p("v_and_b32", Tm[2 * m + 1], s_t1, R[m])
            if g:
                for m in range(8): p("v_add_f32", F[m], F[m], Tm[m])
        O = L[hf][0]
        for m in range(4): p("v_cvt_pk_bf16_f32", O[m], F[2 * m], F[2 * m + 1])
        p("v_permlane32_swap_b32", O[0], O[2]); p("v_permlane32_swap_b32", O[1], O[3])
        p("buffer_store_dwordx4", O, vout, sOut, 0, mods=f"offen offset:{64*hf}")
    p.label(done)
    p("s_endpgm")
    body = p.finalize(lambda key: None)
    return kernel_text("k3_reduce_kernel", body, 88, 96, 88), NWG

def main(out):
    hdr = open(f"cdna_kernels/{NAME}.s.ref").read().split("; Override launch")[0]
    c1, d1 = gen_k1()
    (c2, d2), nwg = gen_k3()
    txt = hdr
    txt += "; @launch kernel=k1_attn_kernel grid=(256,1,1) block=(256,1,1) lds=161408\n"
    if not OPT["k1only"]: txt += f"; @launch kernel=k3_reduce_kernel grid=({nwg},1,1) block=(256,1,1) lds=0\n"
    txt += '.amdgcn_target "amdgcn-amd-amdhsa--gfx950"\n' + macro_defs() + '.text\n'
    txt += c1 + c2
    txt += '.section .rodata,"a"\n' + d1 + d2
    open(out, "w").write(txt)

if __name__ == "__main__":
    for fl in list(OPT):
        if "-" + fl in sys.argv:
            OPT[fl] = True; sys.argv.remove("-" + fl)
    main(sys.argv[1] if len(sys.argv) > 1 else f"cdna_kernels/{NAME}.s")
```
